```python
import torch

def _softmax(x, axis=-1):
    return torch.softmax(x, dim=axis)
def _gelu(x):
    return torch.nn.functional.gelu(x, approximate="tanh")
def _silu(x):
    return torch.nn.functional.silu(x)
def _sigmoid(x):
    return torch.sigmoid(x)
def _layernorm(x, axis=-1, eps=1e-5):
    m = x.mean(dim=axis, keepdim=True)
    v = x.var(dim=axis, keepdim=True, unbiased=False)
    return (x - m) / torch.sqrt(v + eps)
def _scatter_add(tgt, idx, src, axis=0):
    return tgt.clone().index_add_(axis, idx, src)
def _segment_sum(src, seg, n):
    out = torch.zeros((n,) + src.shape[1:], dtype=src.dtype)
    return out.index_add_(0, seg, src)
def _pad(x, pw):
    flat = tuple(v for pair in reversed(pw) for v in pair)
    return torch.nn.functional.pad(x, flat)

kernel_name = 'interleave_layers__spectral_fnet__swiglu_ffn__prompt'

def setup_inputs():

    _w = (lambda a: (lambda t: t.to(torch.bfloat16) if t.is_floating_point() else t)(torch.as_tensor(a)))
    def _A_setup():
        B, S, D = 1, 2048, 448
        ns = torch.arange(S)[:, None] * torch.arange(S)[None, :]
        nd = torch.arange(D)[:, None] * torch.arange(D)[None, :]
        Ws_re = torch.cos(-2.0 * torch.pi * ns / S).to(float)
        Ws_im = torch.sin(-2.0 * torch.pi * ns / S).to(float)
        Wd_re = torch.cos(-2.0 * torch.pi * nd / D).to(float)
        Wd_im = torch.sin(-2.0 * torch.pi * nd / D).to(float)
        return {
            "x": _w((lambda *s: torch.randn(*s, dtype=torch.bfloat16) * 0.05)(B, S, D)),
            "dft_seq_re": _w(Ws_re),
            "dft_seq_im": _w(Ws_im),
            "dft_hid_re": _w(Wd_re),
            "dft_hid_im": _w(Wd_im),
        }
    _A_in = _A_setup()

    def _B_setup():
        B, S, D, F = 1, 2048, 448, 1792
        return {
            "x": _w((lambda *s: torch.randn(*s, dtype=torch.bfloat16) * 0.05)(B, S, D)),
            "w_gate": _w((lambda *s: torch.randn(*s, dtype=torch.bfloat16) * 0.4)(D, F)),
            "w_up": _w((lambda *s: torch.randn(*s, dtype=torch.bfloat16) * 0.4)(D, F)),
            "w_down": _w((lambda *s: torch.randn(*s, dtype=torch.bfloat16) * 0.4)(F, D)),
        }
    _B_in = _B_setup()

    return {
        "A_x": _A_in["x"],
        "A_dft_seq_re": _A_in["dft_seq_re"],
        "A_dft_seq_im": _A_in["dft_seq_im"],
        "A_dft_hid_re": _A_in["dft_hid_re"],
        "A_dft_hid_im": _A_in["dft_hid_im"],
        "B_x": _B_in["x"],
        "B_w_gate": _B_in["w_gate"],
        "B_w_up": _B_in["w_up"],
        "B_w_down": _B_in["w_down"],
    }

def reference(A_x, A_dft_seq_re, A_dft_seq_im, A_dft_hid_re, A_dft_hid_im, B_x, B_w_gate, B_w_up, B_w_down):
    def _A_ref(x, dft_seq_re, dft_seq_im, dft_hid_re, dft_hid_im):
        a = torch.einsum("bsd,ed->bse", x, dft_hid_re)
        b = torch.einsum("bsd,ed->bse", x, dft_hid_im)
        y = torch.einsum("ts,bse->bte", dft_seq_re, a) - torch.einsum("ts,bse->bte", dft_seq_im, b)
        return y

    def _B_ref(x, w_gate, w_up, w_down):
        g = _silu(x @ w_gate)
        u = x @ w_up
        return (g * u) @ w_down

    x = A_x
    x = x + _A_ref(_layernorm(x, axis=-1), A_dft_seq_re, A_dft_seq_im, A_dft_hid_re, A_dft_hid_im)
    x = x + _B_ref(_layernorm(x, axis=-1), B_w_gate, B_w_up, B_w_down)
    x = x + _A_ref(_layernorm(x, axis=-1), A_dft_seq_re, A_dft_seq_im, A_dft_hid_re, A_dft_hid_im)
    x = x + _B_ref(_layernorm(x, axis=-1), B_w_gate, B_w_up, B_w_down)
    return x
```

```python
import re

REG_RE = re.compile(r'^(-|\|)?([vas])(?:(\d+)|\[(\d+):(\d+)\])\|?$')
TRANS = ('v_exp_f32', 'v_log_f32', 'v_rcp_f32', 'v_rsq_f32', 'v_sqrt_f32', 'v_sin_f32', 'v_cos_f32')


def regs_of(tok):
    tok = tok.strip()
    if tok in ('vcc',):
        return {('s', 'vcc')}
    if tok in ('vcc_lo', 'vcc_hi'):
        return {('s', 'vcc')}
    if tok in ('exec', 'exec_lo', 'exec_hi'):
        return {('s', 'exec')}
    if tok == 'm0':
        return {('s', 'm0')}
    m = REG_RE.match(tok)
    if not m:
        return set()
    k = m.group(2)
    if m.group(3) is not None:
        return {(k, int(m.group(3)))}
    return {(k, i) for i in range(int(m.group(4)), int(m.group(5)) + 1)}


class Ins:
    __slots__ = ('text', 'mn', 'cls', 'rd', 'wr', 'ops', 'mods', 'srcC', 'srcAB', 'passes', 'data', 'target', 'cost')

    def __init__(self, text):
        self.text = text
        self.rd, self.wr = set(), set()
        self.srcC, self.srcAB, self.data = set(), set(), set()
        self.passes = 0
        self.target = None
        t = text.split(';')[0].strip()
        if t.endswith(':') or t.startswith('.') or not t:
            self.mn, self.cls, self.ops, self.mods = t, 'label' if t.endswith(':') else 'dir', [], ''
            return
        parts = t.split(None, 1)
        mn = self.mn = parts[0]
        rest = parts[1] if len(parts) > 1 else ''
        ops = [o.strip() for o in re.split(r',(?![^\[]*\])', rest)] if rest else []
        mods = ''
        if ops and not mn.startswith('s_waitcnt'):
            last = ops[-1].split(None, 1)
            ops[-1] = last[0]
            mods = last[1] if len(last) > 1 else ''
        self.ops, self.mods = ops, mods
        R = [regs_of(o) for o in ops]
        un = lambda l: set().union(*l) if l else set()
        if mn.startswith('v_mfma'):
            self.cls = 'mfma'
            self.passes = 8 if '32x32' in mn else 4
            self.wr = R[0]
            self.srcAB = R[1] | R[2]
            self.srcC = R[3]
            self.rd = self.srcAB | self.srcC
        elif mn.startswith('v_'):
            self.cls = 'valu'
            if mn == 'v_nop':
                pass
            elif 'permlane' in mn and 'swap' in mn:
                self.wr = R[0] | R[1]
                self.rd = R[0] | R[1]
            elif mn.startswith('v_cmpx'):
                self.wr = {('s', 'exec')}
                self.rd = un(R)
            elif mn.startswith('v_add_co') or mn.startswith('v_sub_co') or mn.startswith('v_addc_co'):
                self.wr = R[0] | R[1]
                self.rd = un(R[2:])
            else:
                self.wr = R[0]
                self.rd = un(R[1:])
                if mn.startswith(('v_fmac', 'v_dot2c', 'v_mac', 'v_writelane')) or '_dpp' in mn or 'row_' in mods or 'quad_perm' in mods:
                    self.rd |= R[0]
        elif mn.startswith('ds_'):
            if mn.startswith(('ds_read', 'ds_bpermute', 'ds_permute', 'ds_swizzle')):
                self.cls = 'dsr'
                self.wr = R[0]
                self.rd = un(R[1:])
                if 'd16' in mn:
                    self.rd |= R[0]
            else:
                self.cls = 'dsw'
                self.rd = un(R)
        elif mn.startswith(('buffer_', 'global_')):
            if ' lds' in ' ' + mods or 'load_lds' in mn:
                self.cls = 'dma'
                self.rd = un(R) | {('s', 'm0')}
            elif '_load' in mn:
                self.cls = 'vld'
                self.wr = R[0]
                self.rd = un(R[1:])
                if 'd16' in mn:
                    self.rd |= R[0]
            else:
                self.cls = 'vst'
                self.rd = un(R)
                if mn.endswith(('x3', 'x4')):
                    self.data = R[0] if mn.startswith('buffer_') else R[1]
        elif mn.startswith('s_'):
            if mn == 's_waitcnt':
                self.cls = 'wait'
            elif mn == 's_nop':
                self.cls = 'nop'
            elif mn.startswith(('s_load', 's_buffer_load', 's_memtime', 's_memrealtime')):
                self.cls = 'smem'
                self.wr = R[0]
            elif mn.startswith(('s_cbranch', 's_branch', 's_endpgm', 's_setpc', 's_swappc')):
                self.cls = 'branch'
            else:
                self.cls = 'salu'
                if not mn.startswith(('s_cmp', 's_barrier', 's_sleep', 's_setprio', 's_bitcmp')) and R:
                    self.wr = set(R[0])
                    self.rd = un(R[1:])
                    if 'saveexec' in mn:
                        self.wr |= {('s', 'exec')}
                else:
                    self.rd = un(R)
        else:
            raise ValueError('cannot classify: ' + text)


class Wait:
    cls = 'pwait'

    def __init__(self, targets, hoist=False):
        self.targets = targets
        self.hoist = hoist


class Reset:
    cls = 'reset'


class S(list):
    def __call__(self, text, *a):
        out = None
        for line in text.strip().split('\n'):
            line = line.strip()
            if not line or line.startswith(';'):
                continue
            out = Ins(line)
            self.append(out)
        return out

    def wait(self, *targets):
        self.append(Wait([t for t in targets if t is not None]))

    def reset(self):
        self.append(Reset())


def weave(main, fill, per=1, start=0, only=('mfma',), every=1):
    out = S()
    fi = 0
    n = 0
    acc = 0.0
    for ins in main:
        out.append(ins)
        if ins.cls in only:
            if n >= start and (n - start) % every == 0:
                acc += per
                while acc >= 1 and fi < len(fill):
                    out.append(fill[fi])
                    if fill[fi].cls not in ('pwait', 'salu'):
                        acc -= 1
                    fi += 1
            n += 1
    out.extend(fill[fi:])
    return out


VM = ('vld', 'vst', 'dma')
LG = ('dsr', 'dsw')


def need_states(p, c):
    n = 0
    pc, cc = p.cls, c.cls
    if pc == 'valu':
        sw = {r for r in p.wr if r[0] == 's'}
        vw = p.wr - sw
        if sw:
            if cc in VM and sw & c.rd:
                n = max(n, 5)
            if cc == 'valu' and sw & c.rd:
                n = max(n, 4 if 'lane' in c.mn else 2)
            if ('s', 'exec') in sw:
                if cc == 'mfma':
                    n = max(n, 4)
                if cc == 'valu' and ('dpp' in c.mn or 'row_' in c.mods or 'quad_perm' in c.mods):
                    n = max(n, 5)
                if cc == 'valu' and 'lane' in c.mn:
                    n = max(n, 4)
        if vw & c.rd:
            if cc == 'mfma':
                n = max(n, 2)
            if cc == 'valu':
                if 'dpp' in c.mn or 'row_' in c.mods or 'quad_perm' in c.mods or 'permlane' in c.mn:
                    n = max(n, 2)
                if c.mn.startswith(('v_readlane', 'v_readfirstlane')):
                    n = max(n, 1)
            if p.mn in TRANS:
                n = max(n, 1)
            if 'op_sel:' in p.mods or 'sdwa' in p.mn or 'dst_sel' in p.mods:
                n = max(n, 1)
        if p.mn.startswith('v_dot') and vw & (c.rd | c.wr) and not (c.mn == p.mn and not (vw & (c.rd - c.wr))):
            n = max(n, 3)
    elif pc == 'mfma':
        big = 12 if p.passes == 8 else 8
        if cc == 'mfma':
            if p.wr & c.srcAB:
                n = max(n, big)
            if p.wr & c.srcC and not (p.wr == c.srcC and p.passes == c.passes):
                n = max(n, big - 2)
            if p.wr & c.wr and p.passes != c.passes:
                n = max(n, big)
        else:
            if p.wr & (c.rd | c.wr):
                n = max(n, big)
            if cc == 'valu' and p.srcC & c.wr:
                n = max(n, 7 if p.passes == 8 else 3)
            if cc in ('vld', 'dsr') and p.srcC & c.wr:
                n = max(n, 7 if p.passes == 8 else 3)
    elif pc == 'salu':
        if ('s', 'm0') in p.wr and cc == 'dma':
            n = max(n, 1)
    elif pc == 'vst':
        if p.data & c.wr:
            n = max(n, 2)
    return n


def states(ins):
    return int(ins.ops[0]) + 1 if ins.cls == 'nop' else 1


def finalize(stream, report=None):
    out = []
    vmq, lgq = [], []

    def younger(q, pred):
        for i in range(len(q) - 1, -1, -1):
            if pred(q[i]):
                return len(q) - 1 - i
        return None

    def wtext(vm, lg):
        parts = []
        if vm is not None:
            parts.append('vmcnt(%d)' % min(vm, 62))
        if lg is not None:
            parts.append('lgkmcnt(%d)' % min(lg, 14))
        return 's_waitcnt ' + ' '.join(parts)

    def do_wait(vm, lg, hoist):
        nonlocal vmq, lgq
        if vm is None and lg is None:
            return
        pos, v2, l2 = len(out), vm, lg
        if hoist:
            j, a, b, gaps = len(out), vm, lg, 0
            while j > 0 and gaps < 3:
                p = out[j - 1]
                if p.cls in ('label', 'dir', 'branch', 'smem', 'nop') or p.mn == 's_barrier':
                    break
                if p.cls == 'mfma':
                    nxt = out[j] if j < len(out) else None
                    if nxt is None or nxt.cls in ('valu', 'dsr', 'mfma'):
                        pos, v2, l2 = j, a, b
                        break
                    if nxt.cls == 'wait' and nxt.target == 'auto':
                        m1 = re.search(r'vmcnt\((\d+)\)', nxt.text)
                        m2 = re.search(r'lgkmcnt\((\d+)\)', nxt.text)
                        if m1:
                            a = int(m1.group(1)) if a is None else min(a, int(m1.group(1)))
                        if m2:
                            b = int(m2.group(1)) if b is None else min(b, int(m2.group(1)))
                        nxt.text = wtext(a, b)
                        pos = None
                        break
                    gaps += 1
                elif len(out) - j > 12:
                    break
                if p.cls in VM and a is not None:
                    a -= 1
                    if a < 0:
                        break
                if p.cls in LG and b is not None:
                    b -= 1
                    if b < 0:
                        break
                j -= 1
        if pos is not None:
            w = Ins(wtext(v2, l2))
            w.target = 'auto'
            out.insert(pos, w)
        if vm is not None:
            vm = min(vm, 62)
            vmq = vmq[len(vmq) - vm:] if vm else []
        if lg is not None:
            lg = min(lg, 14)
            lgq = lgq[len(lgq) - lg:] if lg else []

    for ins in stream:
        if ins.cls == 'reset':
            vmq, lgq = [], []
            continue
        if ins.cls == 'pwait':
            ids = {id(t) for t in ins.targets}
            lg = younger(lgq, lambda o: id(o) in ids)
            if lg is not None and any(o.cls == 'smem' for o in lgq):
                lg = 0
            do_wait(younger(vmq, lambda o: id(o) in ids), lg, ins.hoist)
            continue
        if ins.cls == 'wait':
            m = re.search(r'vmcnt\((\d+)\)', ins.text)
            if m:
                n = int(m.group(1))
                vmq = vmq[max(0, len(vmq) - n):] if n else []
            m = re.search(r'lgkmcnt\((\d+)\)', ins.text)
            if m:
                n = int(m.group(1))
                lgq = lgq[max(0, len(lgq) - n):] if n else []
            out.append(ins)
            continue
        if ins.cls in ('label', 'dir'):
            out.append(ins)
            continue
        touched = ins.rd | ins.wr
        vm = younger(vmq, lambda o: o.wr & touched)
        lg = younger(lgq, lambda o: o.wr & touched)
        smem = any(o.cls == 'smem' for o in lgq)
        if lg is not None and smem:
            lg = 0
        do_wait(vm, lg, ins.cls == 'mfma' and ins.target == 'hoist' and not smem)
        dist = 0
        pad = 0
        for p in reversed(out[-30:]):
            if p.cls in ('label', 'dir'):
                continue
            need = need_states(p, ins)
            if need > dist:
                pad = max(pad, need - dist)
            dist += states(p)
            if dist >= 20:
                break
        if pad:
            out.append(Ins('s_nop %d' % (pad - 1)))
        out.append(ins)
        if ins.cls in VM:
            vmq.append(ins)
        elif ins.cls in LG or ins.cls == 'smem':
            lgq.append(ins)
    if report is not None:
        report(out)
    return [i.text if i.cls in ('label', 'dir') else '  ' + i.text for i in out]


def slots(ins):
    if ins.cls in ('vld', 'dma', 'vst', 'dsw'):
        return 3
    if ins.cls == 'valu':
        return 2 if ins.mn in TRANS else 1
    if ins.cls == 'dsr':
        return 1
    return 0


def estimate(out):
    t, mf = 0, -100
    for i in out:
        if i.cls in ('label', 'dir'):
            continue
        if i.cls == 'mfma':
            t = max(t, mf + 4 * i.passes)
            mf = t
            t += 4
        elif i.cls == 'valu' or i.cls == 'dsr':
            t = max(t, mf + 8) + (8 if i.mn in TRANS else 4)
        elif i.cls in ('vld', 'dma'):
            t += 12
        elif i.cls == 'dsw':
            t += 24 if '128' in i.mn else 16
        elif i.cls == 'vst':
            t += 28
        elif i.cls == 'nop':
            t += 4 * states(i)
        else:
            t += 4
    return t


class Q:
    def __init__(self, maxdr=2):
        self.items = []

    def add(self, stream, earliest, step=0.0):
        g = earliest
        for ins in stream:
            self.items.append((int(g), ins))
            if ins.cls not in ('pwait', 'salu'):
                g += step


def sched(mf, queues, log=None):
    out = S()
    pos = [0] * len(queues)
    for g, m in enumerate(mf):
        m.target = 'hoist'
        out.append(m)
        free, scal = 2, True
        progress = True
        while progress:
            progress = False
            for qi, q in enumerate(queues):
                while pos[qi] < len(q.items):
                    e, ins = q.items[pos[qi]]
                    if e > g:
                        break
                    if ins.cls == 'pwait':
                        if free < 2 or not scal:
                            break
                        out.append(ins)
                        pos[qi] += 1
                        scal = False
                        progress = True
                        continue
                    c = slots(ins)
                    if c == 0:
                        if free < 2 or not scal:
                            break
                        scal = False
                    elif c == 3:
                        if free < 2 or not scal:
                            break
                        free = 0
                    elif c <= free:
                        free -= c
                    else:
                        break
                    out.append(ins)
                    if log is not None:
                        log[id(ins)] = g
                    pos[qi] += 1
                    progress = True
    left = S()
    for qi, q in enumerate(queues):
        left.extend(ins for e, ins in q.items[pos[qi]:])
    return out, left


def vr(b, n=1, k='v'):
    return '%s%d' % (k, b) if n == 1 else '%s[%d:%d]' % (k, b, b + n - 1)


def ar(b, n=1):
    return vr(b, n, 'a')


def sr(b, n=1):
    return vr(b, n, 's')
```

```python
import sys, os, struct
sys.path.insert(0, os.path.dirname(os.path.abspath(__file__)))
from asmlib import *

NAME = 'interleave_layers__spectral_fnet__swiglu_ffn__prompt'
W1P, W2P, Z1, Z2, X2, FLG, STP, PART = 0, 0x310000, 0x500000, 0x700000, 0x900000, 0xB00000, 0xB10000, 0xC00000
WSN = 0x1A00000
XBYTES = 1835008
OOB = 0x80000000
OPT = dict(stamps=0, clk=0, r0=16, r1=16, r2=0, pre1=26, rep=0, fs=7)
for a in sys.argv[2:]:
    k_, v_ = a.split('=')
    OPT[k_] = int(v_)
MF = 'v_mfma_f32_16x16x32_bf16'
L_WT, L_H, L_ST, L_FIN, L_SX, LDS = 57344, 114688, 143360, 145408, 147456, 155648
RING = 48
LOG2E = 1.4426950408889634
SX_, WS, SO, SW, SD = 's[4:7]', 's[8:11]', 's[12:15]', 's[16:19]', 's[64:67]'
L16, ZR, AD1, AM, VO, VT, HO, HT, HS, HR, STW, STR, FINW, SXW, SXP, WR, ZO, BP = range(4, 22)
STV = 23
TMP, ACC, BIG, TRG = 24, 32, 96, 208
SPIN = 0x20000
FP, FR = FLG + 0x8000, FLG + 0x9000


def f2h(x):
    return '0x%08x' % struct.unpack('<I', struct.pack('<f', x))[0]


def stamp(k, i):
    if OPT['stamps']:
        k('%s s[%d:%d]' % ('s_memtime' if OPT['clk'] else 's_memrealtime', 70 + 2 * i, 71 + 2 * i))


def stamp_save(k, lay):
    if OPT['stamps']:
        k('s_waitcnt lgkmcnt(0)')
        for i in range(15):
            k('v_writelane_b32 v%d, s%d, %d' % (STV, 70 + 2 * i, 16 * lay + i))


def srd(k, d, lo, n):
    if lo != d:
        k('s_mov_b32 s%d, s%d\ns_mov_b32 s%d, s%d' % (d, lo, d + 1, lo + 1))
    k('s_mov_b32 s%d, 0x%x\ns_mov_b32 s%d, 0x00020000' % (d + 2, n, d + 3))


def spin(k, name, load, cmp):
    k('s_mov_b32 s68, 0')
    k('%s:' % name)
    k(load)
    k('s_add_u32 s68, s68, 1\ns_waitcnt vmcnt(0)')
    k(cmp)
    k('''s_cmp_ge_u32 s68, 0x%x
    s_cbranch_scc1 %s_go
    s_nop 2
    s_cbranch_vccnz %s''' % (SPIN, name, name))
    k('%s_go:' % name)


G2 = ([(ks, nt) for ks in (1, 2, 3, 4) for nt in (0, 1)] + [(ks, 2) for ks in (1, 2, 3, 4)] +
      [(ks, nt) for ks in (5, 6) for nt in (0, 1, 2)] + [(ks, 3) for ks in (1, 2, 3, 4)] +
      [(0, 0), (5, 3), (0, 1), (6, 3), (0, 2), (0, 3)] +
      [(ks, nt) for nt in (4, 5, 6) for ks in range(7)])
assert sorted(G2) == sorted((ks, nt) for ks in range(7) for nt in range(7))
SEQ = [(40, p * 4 * 28672 + 1024 * x) for p in range(3) for x in range(28)]
SEQ += [(38, 2048 * ks) for ks in range(14)]
SEQ += [(41, 1024 * (7 * nt + ks)) for ks, nt in G2]


def slot(n):
    return ar(64 + 4 * (n % RING), 4)


class WL:
    def __init__(self):
        self.win = {}
        self.cnt = 0

    def __call__(self, s, n):
        b, off = SEQ[n]
        key = (b, off >> 12)
        if self.win.get(key) is None:
            reg = 46 + self.cnt % 4
            self.cnt += 1
            for x in self.win:
                if self.win[x] == reg:
                    self.win[x] = None
            self.win[key] = reg
            s('s_add_u32 s%d, s%d, %d' % (reg, b, off & ~4095))
        return s('buffer_load_dwordx4 %s, v%d, %s, s%d offen offset:%d sc1' % (slot(n), L16, WS, self.win[key], off & 4095))


def raw_dma(k, soff):
    out = []
    for kp in range(7):
        for o in range(2):
            k('s_add_u32 m0, s39, %d' % (kp * 2048 + o * 1024 - 128 * kp))
            d = k('buffer_load_dwordx4 v%d, %s, s%d offen offset:%d lds' % (24 + o, SX_, soff, 128 * kp))
        out.append(d)
    return out


def raw_read(k, kp):
    for kap in range(2):
        r = k('ds_read_b128 %s, v%d offset:%d' % (ar(4 * (2 * kp + kap), 4), 26 + kap, 2048 * kp))
    return r


def raw_addr(k):
    k('''v_lshrrev_b32 v26, 1, v2
    v_xor_b32 v26, v3, v26
    v_lshlrev_b32 v26, 4, v26
    v_lshl_add_u32 v26, v2, 7, v26
    v_add_u32 v26, s39, v26
    v_xor_b32 v27, 64, v26''')


def a_trig(k):
    T = 232
    k('''s_lshl_b32 s35, s20, 4
    v_add_u32 v{t}, s35, v2
    v_cvt_f32_u32 v{t}, v{t}
    s_lshl_b32 s35, s23, 5
    s_add_u32 s35, s35, s32
    s_lshl_b32 s34, s24, 10
    s_add_u32 s35, s35, s34
    v_lshlrev_b32 v{t1}, 8, v3
    v_add_u32 v{t1}, s35, v{t1}
    v_xor_b32 v{t2}, 32, v{t1}
    v_cvt_f32_u32 v{t1}, v{t1}
    v_cvt_f32_u32 v{t2}, v{t2}
    v_mul_f32 v{t}, 0x3a000000, v{t}
    v_and_b32 v{t3}, 1, v2
    v_mul_u32_u24 v{t3}, 0x8000, v{t3}
    v_lshl_or_b32 v{t3}, v{t3}, 16, v{t3}'''.format(t=T, t1=T + 1, t2=T + 2, t3=T + 3))
    for bo in range(2):
        b = TRG + 12 * bo
        k('v_mul_f32 v%d, v%d, v%d' % (T + 4, T, T + 1 + bo))
        for r in range(1, 4):
            k('v_fmamk_f32 v%d, v%d, %s, v%d' % (T + 4 + r, T, f2h(64.0 * r), T + 4))
        for r in range(4):
            k('v_fract_f32 v%d, v%d' % (T + 4 + r, T + 4 + r))
        for r in range(4):
            k('v_sin_f32 v%d, v%d' % (T + 8 + r, T + 4 + r))
            k('v_cos_f32 v%d, v%d' % (T + 4 + r, T + 4 + r))
        for p in range(2):
            k('v_cvt_pk_bf16_f32 v%d, v%d, v%d' % (b + 4 + p, T + 8 + 2 * p, T + 9 + 2 * p))
            k('v_cvt_pk_bf16_f32 v%d, v%d, v%d' % (b + 2 + p, T + 4 + 2 * p, T + 5 + 2 * p))
        for p in range(2):
            k('v_xor_b32 v%d, 0x80008000, v%d' % (b + p, b + 4 + p))
        for p in range(6):
            k('v_xor_b32 v%d, v%d, v%d' % (b + 6 + p, T + 3, b + p))


def btrg(kind, h, ks):
    return TRG + ((kind * 2 + h) * 2 + ks) * 4


def b_trig(k):
    T = ACC
    k('''v_cvt_f32_u32 v%d, v2
    v_add_u32 v%d, s30, v2
    v_and_b32 v%d, 1, v3
    v_and_b32 v%d, 1, v2
    v_and_b32 v%d, 1, v%d
    v_cvt_f32_u32 v%d, v%d
    v_cvt_f32_u32 v%d, v3
    s_mov_b32 s35, 0x80008000
    v_mul_lo_u32 v%d, v%d, s35
    v_mul_lo_u32 v%d, v%d, s35
    v_mul_lo_u32 v%d, v%d, s35
    v_mul_f32 v%d, 0x3d000000, v%d
    v_mul_f32 v%d, 0xbd000000, v%d
    v_add_f32 v%d, 4.0, v%d
    v_add_f32 v%d, 4.0, v%d
    v_add_f32 v%d, 4.0, v%d''' % (T, T + 1, T + 2, T + 3, T + 4, T + 1, T + 1, T + 1, T + 8,
                                 T + 2, T + 2, T + 3, T + 3, T + 4, T + 4, T, T, T + 1, T + 1,
                                 T + 9, T + 8, T + 10, T + 9, T + 11, T + 10))
    for kind in range(2):
        for i in range(4):
            k('v_mul_f32 v%d, v%d, v%d' % (T + 12 + i, T + kind, T + 8 + i))
        for i in range(4):
            k('v_fract_f32 v%d, v%d' % (T + 12 + i, T + 12 + i))
        for i in range(4):
            k('v_sin_f32 v%d, v%d' % (T + 16 + i, T + 12 + i))
            k('v_cos_f32 v%d, v%d' % (T + 12 + i, T + 12 + i))
        for i in range(4):
            k('v_cvt_pk_bf16_f32 v%d, v%d, v%d' % (btrg(kind, 0, 0) + i, T + 12 + i, T + 16 + i))
        for i in range(4):
            k('v_xor_b32 v%d, v%d, v%d' % (btrg(kind, 0, 1) + i, T + 3 + kind, btrg(kind, 0, 0) + i))
        for i in range(8):
            k('v_xor_b32 v%d, v%d, v%d' % (btrg(kind, 1, 0) + i, T + 2, btrg(kind, 0, 0) + i))


def consts(k):
    k('''s_bfe_u32 s21, s2, 0x20001
    s_lshl_b32 s21, s21, 3
    s_bfe_u32 s35, s2, 0x30003
    s_add_u32 s21, s21, s35
    s_and_b32 s22, s2, 1
    s_lshl_b32 s22, s22, 2
    s_lshr_b32 s35, s2, 6
    s_add_u32 s22, s22, s35
    s_mov_b32 s25, s21
    s_sub_u32 s26, 64, s21
    s_xor_b32 s28, s23, 1
    s_cmp_eq_u32 s21, 0
    s_cselect_b32 s26, 32, s26
    s_cselect_b32 s28, s23, s28
    s_cmp_eq_u32 s23, 0
    s_cselect_b32 s27, s25, s26
    s_cmp_eq_u32 s28, 0
    s_cselect_b32 s30, s25, s26
    s_min_u32 s30, s30, 1
    s_mul_i32 s31, s24, 7
    s_lshl_b32 s29, s21, 3
    s_add_u32 s29, s29, s22
    s_lshl_b32 s29, s29, 2
    s_mul_i32 s36, s27, 14
    s_add_u32 s36, s36, s31
    s_lshl_b32 s36, s36, 11
    s_add_u32 s36, s36, 0x%x
    s_mul_i32 s37, s20, %d
    s_lshl_b32 s35, s33, 12
    s_add_u32 s37, s37, s35
    s_lshl_b32 s35, s32, 6
    s_add_u32 s37, s37, s35
    s_add_u32 s37, s37, 0x%x
    s_mul_i32 s35, s22, 14
    s_add_u32 s38, s35, s23
    s_mul_i32 s38, s38, 28672
    s_lshl_b32 s34, s24, 10
    s_add_u32 s38, s38, s34
    s_add_u32 s40, s35, s20
    s_add_u32 s40, s40, 2
    s_mul_i32 s40, s40, 28672
    s_lshl_b32 s41, s22, 2
    s_add_u32 s41, s41, s20
    s_mul_i32 s41, s41, 50176
    s_add_u32 s41, s41, 0x%x
    s_lshl_b32 s42, s21, 3
    s_lshl_b32 s35, s20, 1
    s_add_u32 s42, s42, s35
    s_lshl_b32 s42, s42, 3
    s_add_u32 s42, s42, s22
    s_mul_i32 s42, s42, 7168
    s_add_u32 s42, s42, 0x%x
    s_add_u32 s43, s42, 4096
    s_add_u32 s44, s42, 57344
    s_add_u32 s45, s42, 61440
    s_mov_b32 s50, 0
    s_mul_i32 s51, s24, 0xffff0000
    s_sub_u32 s52, 0, s24
    s_mov_b32 s53, s52
    s_mov_b32 s3, 0''' % (Z1, 16 * 28672, Z1, W2P, PART))
    k('''v_lshlrev_b32 v{ZR}, 2, v1
    v_add_u32 v{ZR}, s39, v{ZR}
    v_lshrrev_b32 v28, 1, v3
    v_and_b32 v29, 1, v3
    v_lshlrev_b32 v30, 4, v2
    v_lshl_add_u32 v30, v28, 8, v30
    v_lshl_add_u32 v30, v29, 3, v30
    s_mul_i32 s35, s23, 28672
    s_lshl_b32 s34, s31, 9
    s_add_u32 s35, s35, s34
    v_add_u32 v{AD1}, s35, v30
    v_xor_b32 v30, 0x108, v30
    s_mul_i32 s35, s28, 28672
    s_add_u32 s35, s35, {c42}
    s_sub_u32 s35, s35, s34
    v_add_u32 v{AM}, s35, v30
    s_mul_i32 s35, s24, 28672
    v_add_u32 v{VO}, s35, v{L16}
    s_sub_u32 s35, 28672, s35
    v_add_u32 v{VT}, s35, v{L16}
    v_add_u32 v{HR}, {LH}, v{L16}
    s_mul_i32 s34, s24, 14336
    s_lshl_b32 s35, s23, 3
    s_add_u32 s35, s35, s34
    v_add_u32 v{HS}, s35, v{HR}
    s_lshl_b32 s35, s23, 10
    s_lshl_b32 s54, s24, 3
    s_add_u32 s35, s35, s54
    s_add_u32 s35, s35, 1024
    s_add_u32 s54, s35, s34
    v_add_u32 v{HO}, s54, v{HR}
    s_add_u32 s54, s35, 14336
    s_sub_u32 s54, s54, s34
    v_add_u32 v{HT}, s54, v{HR}
    v_mov_b32 v30, s23
    v_mov_b32 v31, s28
    v_cmp_eq_u32 vcc, 0, v28
    v_cndmask_b32 v30, v31, v30, vcc
    v_lshl_add_u32 v30, v30, 1, v29
    v_lshl_add_u32 v30, v30, 4, v2
    v_lshlrev_b32 v{STR}, 5, v30
    v_add_u32 v{STR}, {LST}, v{STR}
    v_lshl_add_u32 v{STW}, v28, 4, v{STR}
    s_lshl_b32 s35, s24, 3
    v_add_u32 v{STW}, s35, v{STW}
    v_lshlrev_b32 v{FINW}, 3, v30
    v_add_u32 v{FINW}, {LFIN}, v{FINW}
    s_lshl_b32 s35, s20, 11
    s_add_u32 s35, s35, {LSX}
    v_add_u32 v{SXW}, s35, v{L16}
    v_xor_b32 v{SXP}, 2048, v{SXW}
    v_add_u32 v{WR}, {LWT}, v{L16}
    s_mov_b32 s35, 28672
    v_lshlrev_b32 v30, 4, v3
    v_mad_u32_u24 v{ZO}, v2, s35, v30
    v_mul_u32_u24 v{BP}, 80, v3'''.format(ZR=ZR, AD1=AD1, AM=AM, VO=VO, VT=VT, HR=HR, HS=HS, HO=HO, HT=HT, STR=STR, STW=STW, FINW=FINW,
                                         SXW=SXW, SXP=SXP, WR=WR, ZO=ZO, BP=BP, L16=L16, c42=42 * 256, LH=L_H, LST=L_ST, LFIN=L_FIN,
                                         LSX=L_SX, LWT=L_WT))
    if OPT['stamps']:
        k('v_mov_b32 v%d, 0' % STV)


def res_soff(k):
    k('''s_lshl_b32 s55, s24, 10
    s_add_u32 s55, s55, s27
    s_mul_i32 s55, s55, 896''')


def gen():
    k = S()
    k('.p2align 8\n.globl %s_kernel\n.type %s_kernel,@function\n%s_kernel:' % (NAME, NAME, NAME))
    stamp(k, 0)
    k('''s_load_dwordx2 s[4:5], s[0:1], 0
    s_load_dwordx8 s[56:63], s[0:1], 48
    s_load_dwordx4 s[64:67], s[0:1], 80
    s_cmp_ge_u32 s2, 256
    s_cbranch_scc1 k_end
    v_lshrrev_b32 v2, 6, v0
    v_and_b32 v1, 63, v0
    v_readfirstlane_b32 s20, v2
    v_lshrrev_b32 v3, 4, v1
    v_lshrrev_b32 v25, 3, v1
    v_and_b32 v24, 7, v1
    v_xor_b32 v24, v24, v3
    v_lshlrev_b32 v24, 4, v24
    s_mov_b32 s35, 57344
    v_mad_u32_u24 v24, v25, s35, v24
    v_xor_b32 v25, 64, v24
    v_add_u32 v25, 0x70000, v25
    v_and_b32 v2, 15, v1
    v_lshlrev_b32 v%d, 4, v1
    s_and_b32 s32, s2, 7
    s_lshl_b32 s32, s32, 2
    s_bfe_u32 s35, s2, 0x20003
    s_add_u32 s32, s32, s35
    s_lshr_b32 s33, s2, 5
    s_lshr_b32 s23, s20, 1
    s_and_b32 s24, s20, 1
    s_mul_i32 s39, s20, 14336
    s_lshl_b32 s54, s23, 5
    s_lshl_b32 s35, s24, 10
    s_add_u32 s54, s54, s35
    s_add_u32 s54, s54, s32
    s_mul_i32 s54, s54, 896
    s_mov_b32 s6, 0x%x
    s_mov_b32 s7, 0x00020000
    s_cmp_ge_u32 s2, 224
    s_cbranch_scc1 k_idle1''' % (L16, XBYTES))
    PW = 64
    k('''s_lshr_b32 s21, s2, 2
    s_and_b32 s22, s2, 3
    s_lshr_b32 s25, s21, 2
    s_lshl_b32 s25, s25, 7
    s_and_b32 s35, s21, 3
    s_lshl_b32 s35, s35, 1
    s_add_u32 s25, s25, s35
    s_mul_i32 s25, s25, 896
    s_mul_i32 s35, s22, 224
    s_add_u32 s25, s25, s35
    s_lshl_b32 s35, s20, 6
    s_add_u32 s25, s25, s35
    s_mov_b32 s35, 28672
    v_lshlrev_b32 v28, 1, v2
    v_mad_u32_u24 v28, v3, s35, v28
    s_waitcnt lgkmcnt(0)''')
    xd = raw_dma(k, 54)
    srd(k, 16, 60, 1792 * 896)
    for e4 in range(4):
        if e4:
            k('s_add_u32 s25, s25, 7168')
        for eh in range(2):
            for z in range(2):
                k('buffer_load_ushort v%d, v28, %s, s25 offen offset:%d' % (PW + 8 * z + 4 * eh + e4, SW, 896 * eh + 32 * z))
    stamp(k, 1)
    k('''s_mul_i32 s35, s21, 9363
    s_lshr_b32 s35, s35, 16
    s_mul_i32 s34, s35, 7
    s_sub_u32 s34, s21, s34
    s_lshl_b32 s35, s35, 2
    s_add_u32 s35, s35, s22
    s_mul_i32 s35, s35, 49
    s_add_u32 s35, s35, s34
    s_mul_i32 s34, s20, 14
    s_add_u32 s35, s35, s34
    s_lshl_b32 s35, s35, 10
    s_add_u32 s69, s35, 0x%x''' % W2P)
    srd(k, 8, 66, WSN)
    srd(k, 12, 62, XBYTES)
    srd(k, 64, 64, 256)
    consts(k)
    T = BIG
    k('''s_lshl_b32 s35, s33, 5
    s_lshl_b32 s34, s24, 4
    s_add_u32 s35, s35, s34
    s_add_u32 s35, s35, 1
    v_add_u32 v28, s35, v2
    v_and_b32 v31, 1, v28
    v_cvt_f32_u32 v28, v28
    v_mul_u32_u24 v31, 0x8000, v31
    v_mul_f32 v28, %s, v28
    v_lshl_or_b32 v31, v31, 16, v31
    s_lshl_b32 s35, s23, 7
    v_lshl_add_u32 v29, v3, 3, s35
    v_cvt_f32_u32 v29, v29
    v_mul_f32 v29, v28, v29
    s_mul_i32 s35, s24, 28672
    s_lshl_b32 s34, s23, 12
    s_add_u32 s35, s35, s34
    v_add_u32 v30, s35, v%d''' % (f2h(-1 / 448), WR))
    for kk in range(4):
        B = T + 32 * (kk & 1)
        if kk == 3:
            k('s_cmp_lg_u32 s23, 0\ns_cbranch_scc1 k_wt3')
        for el in range(8):
            k('v_fmamk_f32 v%d, v28, %s, v29' % (B + el, f2h(32.0 * kk + el)))
        for el in range(8):
            k('v_sin_f32 v%d, v%d' % (B + 8 + el, B + el))
            k('v_cos_f32 v%d, v%d' % (B + el, B + el))
        for x in range(8):
            k('v_cvt_pk_bf16_f32 v%d, v%d, v%d' % (B + 16 + x, B + 2 * x, B + 2 * x + 1))
        for x in range(8):
            k('v_xor_b32 v%d, v31, v%d' % (B + 24 + x, B + 16 + x))
        for fl in range(2):
            for p in range(2):
                k('ds_write_b128 v30, %s offset:%d' % (vr(B + 16 + 8 * fl + 4 * p, 4), 14336 * p + 1024 * kk + 7168 * fl))
    k('k_wt3:')
    a_trig(k)
    raw_addr(k)
    res_soff(k)
    stamp(k, 2)
    for kp in range(7):
        k.wait(xd[kp])
        raw_read(k, kp)
    k('s_waitcnt lgkmcnt(0)')
    raw_dma(k, 55)
    k('v_mov_b32 v28, 0\nbuffer_load_dword v22, v28, %s, 0 offen sc1' % SD)
    k('s_barrier\ns_branch k_kloop')

    k('k_idle1:')
    k.reset()
    k('''s_sub_u32 s21, s2, 224
    s_lshl_b32 s21, s21, 1
    s_add_u32 s21, s21, s23
    s_sub_u32 s22, s2, 224
    s_xor_b32 s35, s20, 2
    s_or_b32 s22, s22, s35
    s_mov_b32 s49, 0
    s_cmp_eq_u32 s22, 0
    s_cselect_b32 s22, 0, 0x%x
    v_add_u32 v29, s22, v%d
    v_mov_b32 v28, s22
    v_mov_b32 v32, 0
    v_mov_b32 v33, 0
    v_mov_b32 v34, 0
    v_mov_b32 v35, 0
    v_mov_b32 v36, 1
    s_mov_b32 s55, 0x%x
    s_mov_b32 s35, 28672
    v_lshlrev_b32 v30, 4, v2
    v_mad_u32_u24 v30, v3, s35, v30
    v_cmp_eq_u32 vcc, 0, v3
    v_cndmask_b32 v31, 0, -1, vcc
    s_waitcnt lgkmcnt(0)
    s_cmp_eq_u32 s24, 0
    s_cselect_b32 s16, s56, s58
    s_cselect_b32 s17, s57, s59''' % (OOB, L16, FLG))
    srd(k, 16, 16, 448 * 3584)
    srd(k, 8, 66, WSN)
    srd(k, 12, 62, XBYTES)
    srd(k, 64, 64, 256)
    k('v_lshlrev_b32 v37, %d, v1\nv_add_u32 v37, s22, v37\nv_lshlrev_b32 v38, 7, v1\nv_add_u32 v38, s22, v38' % OPT['fs'])
    for x in range(4):
        k('s_mov_b32 s35, 0x%x\nbuffer_store_dword v32, v37, %s, s35 offen sc1' % (FLG + (64 * x << OPT['fs']), WS))
    k('s_mov_b32 s35, 0x%x' % FP)
    for x in range(2):
        k('buffer_store_dwordx4 v[32:35], v38, %s, s35 offen offset:%d sc1' % (WS, 16 * x))
    k('s_mov_b32 s56, 0')
    for el in range(1, 8):
        k('s_mov_b32 s%d, %d' % (56 + el, 3584 * el))

    def task_loads(n):
        k('''s_mul_i32 s35, s34, 4682
        s_lshr_b32 s35, s35, 16
        s_mul_i32 s25, s35, 14
        s_sub_u32 s25, s34, s25
        s_mul_i32 s26, s25, 224
        s_lshl_b32 s27, s35, 1
        s_add_u32 s26, s26, s27
        s_add_u32 s26, s26, s24
        s_lshl_b32 s%d, s26, 10
        s_lshl_b32 s26, s35, 5
        s_cmp_lt_u32 s35, 7
        s_addc_u32 s26, s26, 0
        s_mul_i32 s26, s26, 3584
        s_lshl_b32 s25, s25, 8
        s_add_u32 s26, s26, s25
        s_cmp_eq_u32 s35, 7
        s_cselect_b32 s27, %d, 0
        v_add_u32 v%d, s26, v30
        v_and_b32 v%d, s27, v31
        v_sub_u32 v%d, v%d, v%d''' % (46 + n, 224 * 3584, 40 + 2 * n, 41 + 2 * n, 41 + 2 * n, 40 + 2 * n, 41 + 2 * n))
        for el in range(8):
            k('buffer_load_dwordx4 %s, v%d, %s, s%d offen' % (vr(BIG + 32 * n + 4 * el, 4), 40 + 2 * n + (el == 0), SW, 56 + el))

    def task_store(n):
        Lr = BIG + 32 * n
        for o in range(8):
            O = 48 + 4 * ((8 * n + o) % 12)
            for m in range(4):
                k('v_perm_b32 v%d, v%d, v%d, s%d' % (O + m, Lr + 4 * (2 * m + 1) + (o >> 1), Lr + 4 * (2 * m) + (o >> 1), 56 + (o & 1)))
            k('s_add_u32 s35, s%d, %d' % (58 + n, 28672 * o))
            k('buffer_store_dwordx4 %s, v%d, %s, s35 offen sc1' % (vr(O, 4), L16, WS))
    k('''s_and_b32 s69, s21, 15
    s_cmp_lg_u32 s69, 0
    s_cbranch_scc1 k_id_a
    s_lshr_b32 s34, s21, 4
    s_add_u32 s34, s34, 192''')
    task_loads(3)
    k('k_id_a:')
    for n in range(3):
        k('s_add_u32 s34, s21, %d' % (64 * n))
        task_loads(n)
    k('s_waitcnt vmcnt(24)')
    k('buffer_store_dword v36, v28, %s, 0 offen sc1' % SD)
    stamp(k, 1)
    k('''s_mov_b32 s58, s46
    s_mov_b32 s59, s47
    s_mov_b32 s60, s48
    s_mov_b32 s61, s49
    s_mov_b32 s56, 0x05040100
    s_mov_b32 s57, 0x07060302''')
    consts(k)
    raw_addr(k)
    res_soff(k)
    raw_dma(k, 55)
    stamp(k, 2)
    for n in range(3):
        if n == 2:
            k('v_mov_b32 v28, 0\nbuffer_load_dword v22, v28, %s, 0 offen sc1' % SD)
        task_store(n)
    k('s_waitcnt vmcnt(8)\ns_cmp_lg_u32 s69, 0\ns_cbranch_scc1 k_conv')
    task_store(3)
    k('s_branch k_conv')

    k('k_l2:')
    k.reset()
    k('''s_lshl_b32 s54, s23, 5
    s_add_u32 s54, s54, s32
    s_sub_u32 s35, 64, s54
    s_min_u32 s35, s35, s54
    s_and_b32 s35, s35, 31
    s_lshl_b32 s35, s35, 7
    s_lshl_b32 s34, s21, 7
    v_mov_b32 v28, s35
    v_mov_b32 v29, s34
    v_cmp_gt_u32 vcc, 8, v2
    v_cndmask_b32 v28, v29, v28, vcc
    v_and_b32 v29, 7, v1
    v_lshl_add_u32 v28, v29, 2, v28
    s_lshl_b32 s54, s54, 1
    s_add_u32 s54, s54, s24
    s_mul_i32 s54, s54, 14336
    s_add_u32 s54, s54, 0x%x
    s_lshl_b32 s55, s27, 1
    s_add_u32 s55, s55, s24
    s_mul_i32 s55, s55, 14336
    s_add_u32 s55, s55, 0x%x
    s_mov_b32 s35, 0x%x''' % (X2, X2, FR))
    spin(k, 'k_pr', 'buffer_load_dword v29, v28, %s, s35 offen sc1' % WS, 'v_cmp_gt_u32 vcc, 3, v29')
    stamp(k, 0)
    k('s_cmp_ge_u32 s2, 224\ns_cbranch_scc1 k_l2b')
    for ks in range(14):
        if ks and ks % 4 == 0:
            k('s_add_u32 s54, s54, 4096')
        k('buffer_load_dwordx4 %s, v%d, %s, s54 offen offset:%d sc1' % (ar(4 * ks, 4), L16, WS, 1024 * (ks & 3)))
    k('k_l2b:')
    for ks in range(14):
        if ks % 4 == 0:
            k('s_add_u32 m0, s39, %d' % (1024 * ks))
            if ks:
                k('s_add_u32 s55, s55, 4096')
        k('buffer_load_dwordx4 v%d, %s, s55 offen offset:%d sc1 lds' % (L16, WS, 1024 * (ks & 3)))
    wl = WL()
    R0, R1, R2 = OPT['r0'], OPT['r0'] + OPT['r1'], OPT['r0'] + OPT['r1'] + OPT['r2']
    for n in range(R1, R2):
        wl(k, n)
    stamp(k, 1)
    k('s_cmp_ge_u32 s2, 224\ns_cbranch_scc1 k_a2t')

    k('k_kloop:')
    T0, G0, S0, ONES, ZA = 32, 48, 52, 56, 232

    def wf(ks, t):
        return vr(BIG + 4 * ((4 * ks + t) % 28), 4)

    def wread(s, ks, t):
        return s('ds_read_b128 %s, v%d offset:%d' % (wf(ks, t), WR, 14336 * t + 1024 * ks))
    for ks in range(7):
        for t in range(4):
            wread(k, ks, t)
    for i in range(4):
        k('v_mov_b32 v%d, 0x3f803f80' % (ONES + i))
    k('s_mov_b32 s35, %s\nv_mov_b32 v28, %s' % (f2h(1 / 448), f2h(1e-5)))
    k('v_xor_b32 v29, 4096, v%d\nv_xor_b32 v30, 4096, v%d' % (SXW, SXP))
    stamp(k, 3)
    LAG = 4
    mf, q1, q2 = S(), Q(), Q()
    for st in range(14 + LAG):
        if st < 14:
            x = ar(4 * st, 4)
            mf('%s %s, %s, %s, %s' % (MF, vr(G0, 4), x, x, vr(G0, 4) if st else '0'))
            mf('%s %s, %s, %s, %s' % (MF, vr(S0, 4), x, vr(ONES, 4), vr(S0, 4) if st else '0'))
            if st == 13:
                f = S()
                for r in range(4):
                    f('ds_bpermute_b32 v%d, v%d, v%d offset:%d' % (TMP + r, BP, G0 + r, 4 * r))
                for r in range(4):
                    f('v_mul_f32 v%d, s35, v%d' % (S0 + r, S0 + r))
                for r in range(4):
                    f('v_fma_f32 v%d, -v%d, v%d, v28' % (S0 + r, S0 + r, S0 + r))
                q2.add(f, len(mf) + 1)
                f = S()
                for r in range(4):
                    f('v_fma_f32 v%d, v%d, s35, v%d' % (TMP + r, TMP + r, S0 + r))
                for r in range(4):
                    f('v_rsq_f32 v%d, v%d' % (TMP + r, TMP + r))
                q2.add(f, len(mf) + 10)
        ks = st - LAG
        if ks >= 0:
            for t in range(4):
                d = vr(T0 + 4 * t, 4)
                mf('%s %s, %s, %s, %s' % (MF, d, ar(4 * ks, 4), wf(ks, t), d if ks else '0'))
                if ks < 7:
                    f = S()
                    wread(f, ks + 7, t)
                    q1.add(f, len(mf) - 1)
    o, left = sched(mf, [q2, q1])
    k.extend(o)
    k.extend(left)
    stamp(k, 4)
    AF = BIG
    wr = []
    for nu in range(2):
        for p in range(2):
            t = T0 + 8 * nu + 4 * p
            for r in range(2):
                k('v_pk_mul_f32 %s, %s, %s' % (vr(t + 2 * r, 2), vr(t + 2 * r, 2), vr(TMP + 2 * r, 2)))
        for p in range(2):
            t = T0 + 8 * nu + 4 * p
            for r in range(2):
                k('v_cvt_pk_bf16_f32 v%d, v%d, v%d' % (AF + 4 * nu + 2 * p + r, t + 2 * r, t + 2 * r + 1))
        wr.append(k('ds_write_b128 v%d, %s offset:%d' % (SXW, vr(AF + 4 * nu, 4), 1024 * nu)))

    def st1(x):
        for nu in range(2):
            for z in range(2):
                d = vr(ZA + 8 * nu + 4 * z, 4)
                k('%s %s, %s, %s, %s' % (MF, d, vr(AF + 8 * x + 4 * nu, 4), vr(TRG + 6 * x + (2 if z == 0 else 0), 4), d if x else '0'))
    k.wait(*wr)
    k('s_barrier')
    for x in (1, 2, 3):
        for nu in range(2):
            k('ds_read_b128 %s, v%d offset:%d' % (vr(AF + 8 * x + 4 * nu, 4), (None, SXP, 29, 30)[x], 1024 * nu))
    for x in range(4):
        st1(x)
    for nu in range(2):
        for r in range(4):
            k('v_cvt_pk_bf16_f32 v%d, v%d, v%d' % (ACC + 20 + 4 * nu + r, ZA + 8 * nu + r, ZA + 8 * nu + 4 + r))
        k('buffer_store_dwordx4 %s, v%d, %s, s37 offen offset:%d sc1' % (vr(ACC + 20 + 4 * nu, 4), ZO, WS, 2048 * nu))
    stamp(k, 5)
    k('s_cmp_lg_u32 s3, 0\ns_cbranch_scc1 k_a2t')
    k('s_waitcnt vmcnt(2)')
    for z in range(2):
        for m in range(4):
            k('v_lshl_or_b32 v%d, v%d, 16, v%d' % (80 + 4 * z + m, PW + 8 * z + 2 * m + 1, PW + 8 * z + 2 * m))
    k('''s_cmp_eq_u32 s20, 3
    s_cselect_b32 s35, 0x%x, 0
    s_add_u32 s35, s35, 7168
    v_add_u32 v28, s35, v%d
    buffer_store_dwordx4 v[80:83], v%d, %s, s69 offen sc1
    buffer_store_dwordx4 v[84:87], v28, %s, s69 offen sc1''' % (OOB, L16, L16, WS, WS))
    raw_addr(k)
    k('k_conv:')
    for kp in range(7):
        raw_read(k, kp)
    k('v_add_u32 v28, s39, v%d\ns_waitcnt lgkmcnt(0)' % L16)
    for ks in range(14):
        k('ds_write_b128 v28, %s offset:%d' % (ar(4 * ks, 4), 1024 * ks))
    k('''v_cmp_eq_u32 vcc, 0, v22
    v_mov_b32 v28, 0
    s_nop 4
    s_cbranch_vccz k_flagA''')
    spin(k, 'k_pz', 'buffer_load_dword v22, v28, %s, 0 offen sc1' % SD, 'v_cmp_eq_u32 vcc, 0, v22')

    def flag_store(e):
        if e == 1:
            k('s_lshl_b32 s34, s2, %d' % OPT['fs'])
        else:
            k('s_lshl_b32 s34, s21, 7\ns_lshl_b32 s35, s22, 2\ns_add_u32 s34, s34, s35')
        k('''v_mov_b32 v28, s34
        v_mov_b32 v29, 0x%x
        v_cmp_eq_u32 vcc, 0, v0
        v_cndmask_b32 v28, v29, v28, vcc
        s_mul_i32 s34, s3, 3
        s_add_u32 s34, s34, %d
        v_mov_b32 v29, s34
        s_mov_b32 s35, 0x%x''' % (OOB, e, (0, FLG, FP, FR)[e]))
        return 'buffer_store_dword v29, v28, %s, s35 offen sc1' % WS
    k('k_flagA:')
    fs = flag_store(1)
    k('s_waitcnt vmcnt(0) lgkmcnt(0)')
    k('k_flagA2:\ns_barrier')
    k(fs)
    stamp(k, 6)
    b_trig(k)
    k('s_mov_b32 s35, 0x%x' % FLG)
    SUM, SQ, SV = ACC, ACC + 4, ACC + 8
    k('''v_and_b32 v30, 1, v3
    v_mul_u32_u24 v30, 240, v30
    v_add3_u32 v30, v30, v%d, 8
    s_mul_i32 s55, s28, 28672
    v_lshl_add_u32 v31, v2, 4, s55''' % AD1)
    rdq = []
    for u in range(7):
        for h in range(2):
            b = BIG + 16 * u + 4 * h
            k('ds_read_b64 %s, v%d offset:%d' % (vr(b, 2), AD1, 512 * u + 14336 * h))
            k('ds_read_b32 v%d, v30 offset:%d' % (b + 3, 512 * u + 14336 * h))
            k('ds_read_b64 %s, v%d offset:%d' % (vr(b + 10, 2), AM, 512 * (6 - u) + 14336 * h))
        if u == 6:
            for h in range(2):
                k('ds_read_b32 v%d, v31 offset:%d' % (SV + h, 14336 * h))
        for uu in ([u - 2] if u < 6 else [4, 5, 6]):
            if uu < 0:
                continue
            lo = lambda d, x: k('v_lshlrev_b32 v%d, 16, v%d' % (d, x))
            hi = lambda d, x: k('v_and_b32 v%d, 0xffff0000, v%d' % (d, x))
            for h in range(2):
                b = BIG + 16 * uu + 4 * h
                hi(b + 2, b + 1); lo(b + 1, b + 1); hi(b, b); lo(b + 3, b + 3)
                b += 8
                hi(b, b + 3); lo(b + 1, b + 3); lo(b + 3, b + 2); hi(b + 2, b + 2)
    for h in range(2):
        k('v_lshlrev_b32 v%d, 16, v%d' % (SV + h, SV + h))
    k('v_lshlrev_b32 v28, %d, v0' % OPT['fs'])
    spin(k, 'k_pg', 'buffer_load_dword v29, v28, %s, s35 offen sc1' % WS, 'v_cmp_gt_u32 vcc, s34, v29')
    k('s_barrier')
    stamp(k, 7)
    k('s_cmp_lg_u32 s3, 0\ns_cbranch_scc1 k_pro2')

    def prologue(k, lay):
        wl = WL()
        nl = [0]

        def wload(s, cnt=1):
            for _ in range(cnt):
                if lay == 1 and nl[0] < RING:
                    wl(s, nl[0])
                    nl[0] += 1
        dma = []
        for u in range(7):
            if u % 2 == 0:
                k('s_add_u32 m0, s39, %d\ns_add_u32 s35, s36, %d' % (2048 * u, 2048 * u))
            for ks in range(2):
                d = k('buffer_load_dwordx4 v%d, %s, s35 offen offset:%d sc1 lds' % (L16, WS, (u % 2) * 2048 + 1024 * ks))
            dma.append(d)
        wload(k, OPT['pre1'])

        def unit_pre(s, u):
            s.wait(dma[u])
            for ks in range(2):
                for hh in range(2):
                    o = 4 * (2 * u + ks) + 2 * hh
                    s('ds_read2st64_b32 %s, v%d offset0:%d offset1:%d' % (ar(8 * u + 4 * ks + 2 * hh, 2), ZR, o, o + 1))

        def unit_stats(s, u):
            b = BIG + 16 * u
            if u == 6:
                s('v_cndmask_b32 v%d, v%d, v%d, s[50:51]' % (b + 11, b + 11, SV))
                s('v_cndmask_b32 v%d, v%d, v%d, s[50:51]' % (b + 15, b + 15, SV + 1))
            for r in range(4):
                for sl in range(4):
                    x = b + 4 * sl + r
                    if u == 0 and r == 0:
                        s('v_mul_f32 v%d, v%d, v%d' % (SQ + sl, x, x))
                    else:
                        s('v_add_f32 v%d, v%d, v%d' % (SUM + sl, x - 1 if u == 0 and r == 1 else SUM + sl, x))
                        s('v_fmac_f32 v%d, v%d, v%d' % (SQ + sl, x, x))
        unit_pre(k, 0)
        stamp(k, 8)
        for u in range(7):
            m, f = S(), S()
            for ks in range(2):
                for sl in range(4):
                    d = vr(BIG + 16 * u + 4 * sl, 4)
                    m('%s %s, %s, %s, %s' % (MF, d, ar(8 * u + 4 * ks, 4), vr(btrg(sl >> 1, sl & 1, ks), 4), d))
            if u < 6:
                unit_pre(f, u + 1)
            if u:
                unit_stats(f, u - 1)
            wload(f, 2)
            k.extend(weave(m, f, per=4))
        unit_stats(k, 6)
        for b in (SUM, SQ):
            k('v_permlane32_swap_b32 v%d, v%d\nv_permlane32_swap_b32 v%d, v%d' % (b, b + 2, b + 1, b + 3))
        for b in (SUM, SQ):
            k('v_add_f32 v%d, v%d, v%d\nv_add_f32 v%d, v%d, v%d' % (b, b, b + 2, b + 1, b + 1, b + 3))
        for b in (SUM, SQ):
            k('v_permlane16_swap_b32 v%d, v%d' % (b, b + 1))
        k('v_add_f32 v%d, v%d, v%d\nv_add_f32 v%d, v%d, v%d' % (SV, SUM, SUM + 1, SV + 1, SQ, SQ + 1))
        w = k('ds_write_b64 v%d, %s' % (STW, vr(SV, 2)))
        k('s_mov_b32 s35, %s\nv_mov_b32 v28, %s' % (f2h(1 / 448), f2h(1e-5)))
        wload(k, 2)
        k.wait(w)
        k('s_barrier')
        R = ACC + 12
        k('ds_read_b128 %s, v%d\nds_read_b128 %s, v%d offset:16' % (vr(R, 4), STR, vr(R + 4, 4), STR))
        wload(k, 2)
        P = ACC + 20
        k('''v_pk_add_f32 v[{r0}:{r1}], v[{r0}:{r1}], v[{r2}:{r3}]
        v_pk_add_f32 v[{r4}:{r5}], v[{r4}:{r5}], v[{r6}:{r7}]
        v_pk_add_f32 v[{r0}:{r1}], v[{r0}:{r1}], v[{r4}:{r5}]
        v_mul_f32 v{r0}, s35, v{r0}
        v_fma_f32 v{r1}, v{r1}, s35, v28
        v_fma_f32 v{r1}, -v{r0}, v{r0}, v{r1}
        v_rsq_f32 v{r2}, v{r1}
        v_mul_f32 v{r1}, {il}, v{r1}
        v_mul_f32 v{p0}, {nl}, v{r2}
        v_mul_f32 v{p1}, -v{r0}, v{p0}
        v_mul_f32 v{p2}, {nl}, v{r2}
        v_mul_f32 v{p3}, -v{r0}, v{p0}
        v_mul_f32 v{r1}, v{r1}, v{r2}
        v_permlane16_swap_b32 v{p0}, v{p2}
        v_permlane16_swap_b32 v{p1}, v{p3}
        ds_write_b64 v{fw}, v[{r0}:{r1}]
        v_mov_b32 v{p4}, v{p0}
        v_mov_b32 v{p5}, v{p1}
        v_mov_b32 v{p6}, v{p2}
        v_mov_b32 v{p7}, v{p3}
        v_permlane32_swap_b32 v{p0}, v{p4}
        v_permlane32_swap_b32 v{p1}, v{p5}
        v_permlane32_swap_b32 v{p2}, v{p6}
        v_permlane32_swap_b32 v{p3}, v{p7}'''.format(il=f2h(-1 / LOG2E), nl=f2h(-LOG2E), fw=FINW,
                                                    **{'r%d' % i: R + i for i in range(8)}, **{'p%d' % i: P + i for i in range(8)}))
        for u in range(7):
            for sl in range(4):
                b = BIG + 16 * u + 4 * sl
                for r in range(2):
                    k('v_pk_fma_f32 %s, %s, %s, %s op_sel:[0,0,1] op_sel_hi:[1,0,1]' % (vr(b + 2 * r, 2), vr(b + 2 * r, 2), vr(P + 2 * sl, 2), vr(P + 2 * sl, 2)))
            for sl in range(4):
                b = BIG + 16 * u + 4 * sl
                if sl < 2:
                    k('v_cvt_pk_bf16_f32 v%d, v%d, v%d\nv_cvt_pk_bf16_f32 v%d, v%d, v%d' % (b, b, b + 1, b + 1, b + 2, b + 3))
                    w = k('ds_write_b64 v%d, %s offset:%d' % (AD1, vr(b, 2), 512 * u + 14336 * sl))
                else:
                    k('v_cvt_pk_bf16_f32 v%d, v%d, v%d\nv_cvt_pk_bf16_f32 v%d, v%d, v%d' % (b + 1, b + 1, b, b, b + 3, b + 2))
                    w = k('ds_write_b64 v%d, %s offset:%d' % (AM, vr(b, 2), 512 * (6 - u) + 14336 * (sl - 2)))
            wload(k, 2)
        wload(k, RING)
        k.wait(w)
    prologue(k, 1)
    k('k_gemm:')
    k('s_mov_b32 s54, %s' % f2h(LOG2E * LOG2E))
    k('s_barrier')
    stamp(k, 9)

    def lowreg(n):
        return ar(4 * n, 4) if n < 16 else vr(208 + 4 * (n - 16), 4)

    def xn(a, ks):
        return lowreg(4 * ks + a) if ks < 7 else vr(BIG + 16 * (ks - 7) + 4 * a, 4)
    HS_ = {1: 0, 2: 1, 3: 2, 4: 3, 5: 4, 6: 5, 0: 6}

    def hreg(a, ks2):
        return lowreg(4 * HS_[ks2] + a)
    mf = S()
    for p in range(3):
        for ks in range(14):
            for mat in range(2):
                for a in range(4):
                    d = vr(ACC + 32 * (p & 1) + 16 * mat + 4 * a, 4)
                    mf('%s %s, %s, %s, %s' % (MF, d, slot(len(mf) // 4), xn(a, ks), d if ks else '0'))
    for ks in range(14):
        for a in range(4):
            d = vr(ACC + 32 + 4 * a, 4)
            mf('%s %s, %s, %s, %s' % (MF, d, slot(len(mf) // 4), xn(a, ks), d if ks else '0'))
    first2, last2, seen = {}, {}, set()
    for ks, nt in G2:
        first2.setdefault(ks, len(mf))
        for a in range(4):
            d = vr(BIG + 16 * nt + 4 * a, 4)
            mf('%s %s, %s, %s, %s' % (MF, d, slot(len(mf) // 4), hreg(a, ks), d if nt in seen else '0'))
        seen.add(nt)
        last2[nt] = len(mf) - 1
    assert len(mf) == 588
    dead = []

    qx, qc, ql, qe, qp = Q(), Q(), Q(), Q(), Q()
    NPRE = 8
    for n in range(56):
        ks, a = n // 4, n % 4
        s = k if n < NPRE else S()
        r = s('ds_read_b128 %s, v%d offset:%d' % (xn(a, ks), VO if a < 2 else VT, 14336 * (a & 1) + 1024 * ks))
        if n >= NPRE:
            qx.add(s, (n - NPRE) // 2 * 3)
            dead.append((r, 8 * ks + a - 6))
    wl = WL()
    pace = 3
    for n in range(RING, len(SEQ)):
        s = S()
        r = wl(s, n)
        ql.add(s, max(4 * (n - RING) + 3, int(pace)))
        pace += 4.5 if pace < 334 else (11 if pace < 450 else 5)
        dead.append((r, 4 * n - 40))
    un = [0]

    def unit(s, G, U, addr, off, sel=False):
        t = TMP + 4 * (un[0] & 1)
        un[0] += 1
        if sel:
            for j in range(4):
                s('v_cndmask_b32 v%d, v%d, v%d, s[52:53]' % (t + j, G + j, U + j))
        for j in range(4):
            s('v_exp_f32 v%d, v%d' % (t + j, t + j if sel else G + j))
        for j in range(4):
            s('v_mul_f32 v%d, v%d, v%d' % (G + j, G + j, U + j))
        for j in range(4):
            s('v_fma_f32 v%d, v%d, s54, s54' % (t + j, t + j))
        for j in range(4):
            s('v_rcp_f32 v%d, v%d' % (t + j, t + j))
        for j in range(4):
            s('v_mul_f32 v%d, v%d, v%d' % (t + j, t + j, G + j))
        for j in range(2):
            s('v_cvt_pk_bf16_f32 v%d, v%d, v%d' % (t + j, t + 2 * j, t + 2 * j + 1))
        return s('ds_write_b64 v%d, %s offset:%d' % (addr, vr(t, 2), off))

    def hread(s, a, ks2):
        r = s('ds_read_b128 %s, v%d offset:%d' % (hreg(a, ks2), HR, 7168 * a + 1024 * ks2))
        dead.append((r, first2[ks2] + a - 5))
        return r
    hw = []
    bars = []
    for p in range(3):
        s = S()
        for a in range(4):
            G = ACC + 32 * (p & 1) + 4 * a
            hw.append(unit(s, G, G + 16, HO if a < 2 else HT, 2048 * p + 7168 * (a & 1)))
        if p < 2:
            dead.append((hw[-1], 112 * (p + 2) - 1))
        if p == 1:
            s.wait(*hw)
            bars.append(s('s_barrier'))
        qe.add(s, 112 * (p + 1) + 2)
    h14 = []
    for ks2 in (1, 2, 3, 4):
        for a in range(4):
            s = S()
            h14.append(hread(s, a, ks2))
            qc.add(s, max(336 + 4 * HS_[ks2] + 4, first2[ks2] + (a & 2) - 24))
    s = S()
    sw = [s('ds_write_b128 v%d, %s offset:%d' % (SXW, vr(ACC + 32 + 8 + 4 * z, 4), 1024 * z)) for z in range(2)]
    qs = Q()
    qs.add(s, 394)
    s = S()
    s.wait(*(hw[8:] + sw))
    bars.append(s('s_barrier'))
    for z in range(2):
        s('ds_read_b128 %s, v%d offset:%d' % (vr(ACC + 48 + 4 * z, 4), SXP, 1024 * z))
    for ks2 in (5, 6):
        for a in range(4):
            hread(s, a, ks2)
    hs = [unit(s, ACC + 32 + 4 * z, ACC + 48 + 4 * z, HS, 7168 * z, True) for z in range(2)]
    s.wait(*hs)
    bars.append(s('s_barrier'))
    for a in range(4):
        hread(s, a, 0)
    qe.add(s, 397)
    for nt in sorted(range(7), key=lambda x: last2[x]):
        s = S()
        for pi in range(2):
            b = BIG + 16 * nt + 8 * pi
            for j in range(4):
                s('v_cvt_pk_bf16_f32 v%d, v%d, v%d' % (b + j, b + 2 * j, b + 2 * j + 1))
            s('buffer_store_dwordx4 %s, v%d, %s, s%d offen offset:%d sc1' % (vr(b, 4), L16, WS, 42 + 2 * pi + (nt >> 2), 1024 * (nt & 3)))
        qp.add(s, last2[nt] + 2)
    log = {}
    o, left = sched(mf, [qx, qs, qc, ql, qe, qp], log)
    for ins, d in dead:
        assert log.get(id(ins), 999) <= d, (ins.text, log.get(id(ins)), d)
    assert log[id(bars[0])] < log[id(h14[0])] and log[id(sw[1])] < log[id(bars[1])]
    if OPT['rep']:
        print('barriers at', [log[id(b)] for b in bars], 'first2', first2, 'last2', last2, 'left', len(left), 'hw', [log[id(x)] for x in hw + hs])
    if OPT['stamps']:
        i = [j for j, x in enumerate(o) if x.cls == 'mfma'][392]
        s = S()
        stamp(s, 10)
        o[i + 1:i + 1] = s
    k.extend(o)
    k.extend(left)
    stamp(k, 11)
    k('s_cmp_lg_u32 s3, 0\ns_cbranch_scc1 k_p0')
    wl = WL()
    for n in range(R0):
        wl(k, n)
    k('k_p0:')

    SEL, X1, V = ACC, ACC + 8, ACC + 32
    h_, o_, ch, b0, a1, a2, a3, fa, mu, sg, t0, t1, t2, O0, O1, PB = range(V, V + 16)
    k('''s_lshr_b32 s56, s22, 1
    s_and_b32 s57, s22, 1
    v_lshrrev_b32 v{h}, 1, v3
    v_and_b32 v{o}, 1, v3
    s_mul_i32 s35, s56, 14
    s_lshl_b32 s34, s20, 1
    s_add_u32 s35, s35, s34
    v_add_u32 v{ch}, s35, v{o}
    v_mul_u32_u24 v{b0}, 14336, v{h}
    v_lshl_add_u32 v{b0}, v2, 4, v{b0}
    v_lshl_add_u32 v{b0}, v{ch}, 8, v{b0}
    s_mul_i32 s34, s57, 28672
    s_cmp_ge_u32 s56, 2
    s_cselect_b32 s58, 2, 0
    s_cselect_b32 s59, 0, -242
    s_cselect_b32 s60, 0, 7410
    s_cselect_b32 s61, 28, 0
    s_sub_u32 s60, s60, 242
    s_add_u32 s58, s58, s34
    s_add_u32 s59, s59, s34
    s_add_u32 s60, s60, s34
    v_add_u32 v{a1}, s58, v{b0}
    v_add_u32 v{a2}, s59, v{b0}
    v_add_u32 v{a3}, s60, v{b0}
    v_cmp_eq_u32 vcc, s61, v{ch}
    v_cndmask_b32 v{a3}, v{a2}, v{a3}, vcc
    v_add_u32 v{a2}, 2048, v{a2}
    s_lshl_b32 s34, s57, 8
    s_add_u32 s34, s34, {fin}
    v_lshl_add_u32 v{fa}, v{h}, 4, v2
    v_lshl_add_u32 v{t0}, v{fa}, 3, s34
    ds_read_b64 v[{mu}:{sg}], v{t0}'''.format(h=h_, o=o_, ch=ch, b0=b0, a1=a1, a2=a2, a3=a3, fa=fa, mu=mu, sg=sg, t0=t0, fin=L_FIN))
    for j in range(16):
        k('v_mov_b32 v%d, 0' % (X1 + j))
    for u_ in range(2):
        k('ds_read_u16_d16_hi v%d, v%d' % (X1 + 8 * u_, a3 if u_ == 0 else a2))
        for j in range(1, 8):
            k('ds_read_u16_d16_hi v%d, v%d offset:%d' % (X1 + 8 * u_ + j, a1, 2048 * u_ + 2 * (j - 1)))
    k('''v_lshrrev_b32 v{t0}, 3, v2
    v_bfe_u32 v{t1}, v2, 1, 1
    v_lshl_add_u32 v{t0}, v{t0}, 1, v{t1}
    v_lshl_add_u32 v{t0}, v{o}, 2, v{t0}
    v_bfe_u32 v{t1}, v2, 2, 1
    v_cmp_eq_u32 vcc, v{t1}, v{h}
    v_cndmask_b32 v{t0}, 63, v{t0}, vcc
    v_and_b32 v{t1}, 1, v2
    v_lshlrev_b32 v{t1}, 4, v{t1}
    v_mov_b32 v{t2}, 0x3f80
    v_lshlrev_b32 v{t1}, v{t1}, v{t2}'''.format(t0=t0, t1=t1, t2=t2, o=o_, h=h_))
    for j in range(8):
        k('v_cmp_eq_u32 vcc, %d, v%d\nv_cndmask_b32 v%d, 0, v%d, vcc' % (j, t0, SEL + j, t1))
    k('''s_cmp_eq_u32 s57, 0
    s_cselect_b32 s34, s25, s26
    s_mul_i32 s58, s34, 896
    s_mul_i32 s34, s34, 28672
    s_add_u32 s34, s34, 0x{x2:x}
    s_mov_b32 s35, 57344
    v_lshlrev_b32 v{O1}, 4, v{ch}
    v_mad_u32_u24 v{O1}, v{fa}, s35, v{O1}
    v_add_u32 v{O1}, s58, v{O1}
    v_add_u32 v{O0}, s34, v{b0}
    s_cmp_eq_u32 s3, 0
    s_cselect_b64 vcc, -1, 0
    s_cselect_b32 s58, 11, 7
    s_lshl_b32 s58, 1, s58
    v_cndmask_b32 v{O0}, v{O1}, v{O0}, vcc
    s_cmp_eq_u32 s20, 3
    s_cselect_b32 s59, 0x{oob:x}, 0
    s_add_u32 s58, s58, s59
    s_add_u32 s59, s59, 4096
    v_add_u32 v{O1}, s58, v{O0}
    v_add_u32 v{PB}, s59, v{L16}
    s_mul_i32 s60, s29, 14336
    s_lshl_b32 s35, s20, 10
    s_add_u32 s60, s60, s35
    s_add_u32 s60, s60, 0x{part:x}
    s_lshl_b32 s61, s21, 7
    s_add_u32 s61, s61, 0x{flg:x}
    v_and_b32 v30, 7, v1
    v_lshlrev_b32 v30, 2, v30'''.format(x2=X2, O0=O0, O1=O1, ch=ch, fa=fa, b0=b0, oob=OOB, PB=PB, L16=L16, part=PART, flg=FP))
    for j in range(16):
        k('v_fma_f32 v%d, v%d, v%d, v%d' % (X1 + j, X1 + j, sg, mu))
    fs = flag_store(2)
    k('s_cmp_eq_u32 s3, 0\ns_cbranch_scc1 k_p1\ns_waitcnt vmcnt(0)\nk_p1:\ns_waitcnt vmcnt(%d)\ns_barrier' % R0)
    k(fs)
    stamp(k, 12)
    spin(k, 'k_pp', 'buffer_load_dword v31, v30, %s, s61 offen sc1' % WS, 'v_cmp_gt_u32 vcc, s34, v31')
    stamp(k, 13)
    for c in range(8):
        k('s_add_u32 s35, s60, %d' % (7168 * c))
        for u_ in range(2):
            k('buffer_load_dwordx4 %s, v%d, %s, s35 offen sc1' % (ar(8 * c + 4 * u_, 4), L16 if u_ == 0 else PB, WS))
    for c in range(8):
        for u_ in range(2):
            for z in range(2):
                d = vr(X1 + 8 * u_ + 4 * z, 4)
                k('%s %s, %s, %s, %s' % (MF, d, vr(SEL + 4 * z, 4), ar(8 * c + 4 * u_, 4), d))
    for u_ in range(2):
        b = X1 + 8 * u_
        for j in range(4):
            k('v_cvt_pk_bf16_f32 v%d, v%d, v%d' % (b + j, b + 2 * j, b + 2 * j + 1))
    k('s_cmp_lg_u32 s3, 0\ns_cbranch_scc1 k_fin')
    for u_ in range(2):
        xs = k('buffer_store_dwordx4 %s, v%d, %s, 0 offen sc1' % (vr(X1 + 8 * u_, 4), O0 + u_, WS))
    stamp(k, 14)
    wl = WL()
    for n in range(R0, R1):
        wl(k, n)
    fs = flag_store(3)
    k.wait(xs)
    k('s_barrier')
    k(fs)
    stamp_save(k, 0)
    a_trig(k)
    k('''s_mov_b32 s3, 1
    s_add_u32 s36, s36, 0x%x
    s_add_u32 s37, s37, 0x%x
    s_branch k_l2''' % (Z2 - Z1, Z2 - Z1))
    k('k_fin:')
    k.reset()
    for u_ in range(2):
        k('buffer_store_dwordx4 %s, v%d, %s, 0 offen' % (vr(X1 + 8 * u_, 4), O0 + u_, SO))
    if OPT['stamps']:
        k('s_waitcnt vmcnt(0)')
        stamp(k, 14)
        stamp_save(k, 1)
        k('''s_lshl_b32 s35, s2, 2
        s_add_u32 s35, s35, s20
        s_lshl_b32 s35, s35, 8
        s_add_u32 s35, s35, 0x%x
        v_lshlrev_b32 v28, 2, v1
        buffer_store_dword v%d, v28, %s, s35 offen''' % (STP, STV, WS))
    k('k_end:\ns_endpgm')
    k('k_a2t:')
    k.reset()
    wl = WL()
    for n in range(R2, RING):
        wl(k, n)
    flag_store(1)
    k('s_waitcnt vmcnt(%d)\ns_branch k_flagA2' % (RING - R2))
    k('k_pro2:')
    k.reset()
    prologue(k, 2)
    k('s_branch k_gemm')
    return k


HDR = open('cdna_kernels/%s.s.ref' % NAME).read().split('; Override launch geometry')[0]


def main():
    out = [HDR.rstrip()]
    out.append('; @launch grid=(256,1,1) block=(256,1,1) lds=%d' % LDS)
    out.append('.amdgcn_target "amdgcn-amd-amdhsa--gfx950"\n.text')
    out += finalize(gen())
    out.append('''.section .rodata,"a"
.p2align 6
.amdhsa_kernel %s_kernel
  .amdhsa_next_free_vgpr 512
  .amdhsa_next_free_sgpr 102
  .amdhsa_accum_offset 256
  .amdhsa_group_segment_fixed_size 0
  .amdhsa_kernarg_size 96
  .amdhsa_user_sgpr_count 2
  .amdhsa_user_sgpr_kernarg_segment_ptr 1
  .amdhsa_system_sgpr_workgroup_id_x 1
.end_amdhsa_kernel
''' % NAME)
    open(sys.argv[1], 'w').write('\n'.join(out) + '\n')


main()
```

```python
import re

REG_RE = re.compile(r'^(-|\|)?([vas])(?:(\d+)|\[(\d+):(\d+)\])\|?$')
TRANS = ('v_exp_f32', 'v_log_f32', 'v_rcp_f32', 'v_rsq_f32', 'v_sqrt_f32', 'v_sin_f32', 'v_cos_f32')


def regs_of(tok):
    tok = tok.strip()
    if tok in ('vcc',):
        return {('s', 'vcc')}
    if tok in ('vcc_lo', 'vcc_hi'):
        return {('s', 'vcc')}
    if tok in ('exec', 'exec_lo', 'exec_hi'):
        return {('s', 'exec')}
    if tok == 'm0':
        return {('s', 'm0')}
    m = REG_RE.match(tok)
    if not m:
        return set()
    k = m.group(2)
    if m.group(3) is not None:
        return {(k, int(m.group(3)))}
    return {(k, i) for i in range(int(m.group(4)), int(m.group(5)) + 1)}


class Ins:
    __slots__ = ('text', 'mn', 'cls', 'rd', 'wr', 'ops', 'mods', 'srcC', 'srcAB', 'passes', 'data', 'target', 'cost', 'opt')

    def __init__(self, text):
        self.text = text
        self.rd, self.wr = set(), set()
        self.srcC, self.srcAB, self.data = set(), set(), set()
        self.passes = 0
        self.target = None
        self.opt = False
        t = text.split(';')[0].strip()
        if t.endswith(':') or t.startswith('.') or not t:
            self.mn, self.cls, self.ops, self.mods = t, 'label' if t.endswith(':') else 'dir', [], ''
            return
        parts = t.split(None, 1)
        mn = self.mn = parts[0]
        rest = parts[1] if len(parts) > 1 else ''
        ops = [o.strip() for o in re.split(r',(?![^\[]*\])', rest)] if rest else []
        mods = ''
        if ops and not mn.startswith('s_waitcnt'):
            last = ops[-1].split(None, 1)
            ops[-1] = last[0]
            mods = last[1] if len(last) > 1 else ''
        self.ops, self.mods = ops, mods
        R = [regs_of(o) for o in ops]
        un = lambda l: set().union(*l) if l else set()
        if mn.startswith('v_mfma'):
            self.cls = 'mfma'
            self.passes = 8 if '32x32' in mn else 4
            self.wr = R[0]
            self.srcAB = R[1] | R[2]
            self.srcC = R[3]
            self.rd = self.srcAB | self.srcC
        elif mn.startswith('v_'):
            self.cls = 'valu'
            if mn == 'v_nop':
                pass
            elif 'permlane' in mn and 'swap' in mn:
                self.wr = R[0] | R[1]
                self.rd = R[0] | R[1]
            elif mn.startswith('v_cmpx'):
                self.wr = {('s', 'exec')}
                self.rd = un(R)
            elif mn.startswith('v_add_co') or mn.startswith('v_sub_co') or mn.startswith('v_addc_co'):
                self.wr = R[0] | R[1]
                self.rd = un(R[2:])
            else:
                self.wr = R[0]
                self.rd = un(R[1:])
                if mn.startswith(('v_fmac', 'v_dot2c', 'v_mac', 'v_writelane')) or '_dpp' in mn or 'row_' in mods or 'quad_perm' in mods:
                    self.rd |= R[0]
        elif mn.startswith('ds_'):
            if mn.startswith(('ds_read', 'ds_bpermute', 'ds_permute', 'ds_swizzle')):
                self.cls = 'dsr'
                self.wr = R[0]
                self.rd = un(R[1:])
                if 'd16' in mn:
                    self.rd |= R[0]
            else:
                self.cls = 'dsw'
                self.rd = un(R)
        elif mn.startswith(('buffer_', 'global_')):
            if ' lds' in ' ' + mods or 'load_lds' in mn:
                self.cls = 'dma'
                self.rd = un(R) | {('s', 'm0')}
            elif '_load' in mn:
                self.cls = 'vld'
                self.wr = R[0]
                self.rd = un(R[1:])
                if 'd16' in mn:
                    self.rd |= R[0]
            else:
                self.cls = 'vst'
                self.rd = un(R)
                if mn.endswith(('x3', 'x4')):
                    self.data = R[0] if mn.startswith('buffer_') else R[1]
        elif mn.startswith('s_'):
            if mn == 's_waitcnt':
                self.cls = 'wait'
            elif mn == 's_nop':
                self.cls = 'nop'
            elif mn.startswith(('s_load', 's_buffer_load', 's_memtime', 's_memrealtime')):
                self.cls = 'smem'
                self.wr = R[0]
            elif mn.startswith(('s_cbranch', 's_branch', 's_endpgm', 's_setpc', 's_swappc')):
                self.cls = 'branch'
            else:
                self.cls = 'salu'
                if not mn.startswith(('s_cmp', 's_barrier', 's_sleep', 's_setprio', 's_bitcmp')) and R:
                    self.wr = set(R[0])
                    self.rd = un(R[1:])
                    if 'saveexec' in mn:
                        self.wr |= {('s', 'exec')}
                else:
                    self.rd = un(R)
        else:
            raise ValueError('cannot classify: ' + text)


class Wait:
    cls = 'pwait'

    def __init__(self, targets, hoist=False):
        self.targets = targets
        self.hoist = hoist


class Reset:
    cls = 'reset'


class Seed:
    cls = 'seed'

    def __init__(self, vm):
        self.vm = list(vm)


class S(list):
    def __call__(self, text, *a):
        out = None
        for line in text.strip().split('\n'):
            line = line.strip()
            if not line or line.startswith(';'):
                continue
            out = Ins(line)
            self.append(out)
        return out

    def wait(self, *targets):
        self.append(Wait([t for t in targets if t is not None]))

    def reset(self):
        self.append(Reset())


def weave(main, fill, per=1, start=0, only=('mfma',), every=1):
    out = S()
    fi = 0
    n = 0
    acc = 0.0
    for ins in main:
        out.append(ins)
        if ins.cls in only:
            if n >= start and (n - start) % every == 0:
                acc += per
                while acc >= 1 and fi < len(fill):
                    out.append(fill[fi])
                    if fill[fi].cls not in ('pwait', 'salu'):
                        acc -= 1
                    fi += 1
            n += 1
    out.extend(fill[fi:])
    return out


VM = ('vld', 'vst', 'dma')
LG = ('dsr', 'dsw')


def need_states(p, c):
    n = 0
    pc, cc = p.cls, c.cls
    if pc == 'valu':
        sw = {r for r in p.wr if r[0] == 's'}
        vw = p.wr - sw
        if sw:
            if cc in VM and sw & c.rd:
                n = max(n, 5)
            if cc == 'valu' and sw & c.rd:
                n = max(n, 4 if 'lane' in c.mn else 2)
            if ('s', 'exec') in sw:
                if cc == 'mfma':
                    n = max(n, 4)
                if cc == 'valu' and ('dpp' in c.mn or 'row_' in c.mods or 'quad_perm' in c.mods):
                    n = max(n, 5)
                if cc == 'valu' and 'lane' in c.mn:
                    n = max(n, 4)
        if vw & c.rd:
            if cc == 'mfma':
                n = max(n, 2)
            if cc == 'valu':
                if 'dpp' in c.mn or 'row_' in c.mods or 'quad_perm' in c.mods or 'permlane' in c.mn:
                    n = max(n, 2)
                if c.mn.startswith(('v_readlane', 'v_readfirstlane')):
                    n = max(n, 1)
            if p.mn in TRANS:
                n = max(n, 1)
            if 'op_sel:' in p.mods or 'sdwa' in p.mn or 'dst_sel' in p.mods:
                n = max(n, 1)
        if p.mn.startswith('v_dot') and vw & (c.rd | c.wr) and not (c.mn == p.mn and not (vw & (c.rd - c.wr))):
            n = max(n, 3)
    elif pc == 'mfma':
        big = 12 if p.passes == 8 else 8
        if cc == 'mfma':
            if p.wr & c.srcAB:
                n = max(n, big)
            if p.wr & c.srcC and not (p.wr == c.srcC and p.passes == c.passes):
                n = max(n, big - 2)
            if p.wr & c.wr and p.passes != c.passes:
                n = max(n, big)
        else:
            if p.wr & (c.rd | c.wr):
                n = max(n, big)
            if cc == 'valu' and p.srcC & c.wr:
                n = max(n, 7 if p.passes == 8 else 3)
            if cc in ('vld', 'dsr') and p.srcC & c.wr:
                n = max(n, 7 if p.passes == 8 else 3)
    elif pc == 'salu':
        if ('s', 'm0') in p.wr and cc == 'dma':
            n = max(n, 1)
    elif pc == 'vst':
        if p.data & c.wr:
            n = max(n, 2)
    return n


def states(ins):
    return int(ins.ops[0]) + 1 if ins.cls == 'nop' else 1


def finalize(stream, report=None):
    out = []
    vmq, lgq = [], []

    def younger(q, pred):
        best = None
        for i in range(len(q) - 1, -1, -1):
            if pred(q[i]):
                n = len(q) - 1 - i if q[i].opt else sum(not x.opt for x in q[i + 1:])
                best = n if best is None else min(best, n)
                if not q[i].opt:
                    break
        return best

    def keep(q, n):
        out_, c = [], 0
        for i in range(len(q) - 1, -1, -1):
            if q[i].opt:
                if len(q) - 1 - i < n:
                    out_.append(q[i])
            elif c < n:
                out_.append(q[i])
                c += 1
        return out_[::-1]

    def wtext(vm, lg):
        parts = []
        if vm is not None:
            parts.append('vmcnt(%d)' % min(vm, 62))
        if lg is not None:
            parts.append('lgkmcnt(%d)' % min(lg, 14))
        return 's_waitcnt ' + ' '.join(parts)

    def do_wait(vm, lg, hoist):
        nonlocal vmq, lgq
        if vm is None and lg is None:
            return
        pos, v2, l2 = len(out), vm, lg
        if hoist:
            j, a, b, gaps = len(out), vm, lg, 0
            while j > 0 and gaps < 3:
                p = out[j - 1]
                if p.cls in ('label', 'dir', 'branch', 'smem', 'nop') or p.mn == 's_barrier':
                    break
                if p.cls == 'mfma':
                    nxt = out[j] if j < len(out) else None
                    if nxt is None or nxt.cls in ('valu', 'dsr', 'mfma'):
                        pos, v2, l2 = j, a, b
                        break
                    if nxt.cls == 'wait' and nxt.target == 'auto':
                        m1 = re.search(r'vmcnt\((\d+)\)', nxt.text)
                        m2 = re.search(r'lgkmcnt\((\d+)\)', nxt.text)
                        if m1:
                            a = int(m1.group(1)) if a is None else min(a, int(m1.group(1)))
                        if m2:
                            b = int(m2.group(1)) if b is None else min(b, int(m2.group(1)))
                        nxt.text = wtext(a, b)
                        pos = None
                        break
                    gaps += 1
                elif len(out) - j > 12:
                    break
                if p.cls in VM and a is not None:
                    a -= 1
                    if a < 0:
                        break
                if p.cls in LG and b is not None:
                    b -= 1
                    if b < 0:
                        break
                j -= 1
        if pos is not None:
            w = Ins(wtext(v2, l2))
            w.target = 'auto'
            out.insert(pos, w)
        if vm is not None:
            vm = min(vm, 62)
            vmq = keep(vmq, vm)
        if lg is not None:
            lg = min(lg, 14)
            lgq = lgq[len(lgq) - lg:] if lg else []

    for ins in stream:
        if ins.cls == 'reset':
            vmq, lgq = [], []
            continue
        if ins.cls == 'seed':
            vmq = list(ins.vm)
            continue
        if ins.cls == 'pwait':
            ids = {id(t) for t in ins.targets}
            lg = younger(lgq, lambda o: id(o) in ids)
            if lg is not None and any(o.cls == 'smem' for o in lgq):
                lg = 0
            do_wait(younger(vmq, lambda o: id(o) in ids), lg, ins.hoist)
            continue
        if ins.cls == 'wait':
            m = re.search(r'vmcnt\((\d+)\)', ins.text)
            if m:
                n = int(m.group(1))
                vmq = keep(vmq, n)
            m = re.search(r'lgkmcnt\((\d+)\)', ins.text)
            if m:
                n = int(m.group(1))
                lgq = lgq[max(0, len(lgq) - n):] if n else []
            out.append(ins)
            continue
        if ins.cls in ('label', 'dir'):
            out.append(ins)
            continue
        touched = ins.rd | ins.wr
        vm = younger(vmq, lambda o: o.wr & touched)
        lg = younger(lgq, lambda o: o.wr & touched)
        smem = any(o.cls == 'smem' for o in lgq)
        if lg is not None and smem:
            lg = 0
        do_wait(vm, lg, ins.cls == 'mfma' and ins.target == 'hoist' and not smem)
        dist = 0
        pad = 0
        for p in reversed(out[-30:]):
            if p.cls in ('label', 'dir'):
                continue
            need = need_states(p, ins)
            if need > dist:
                pad = max(pad, need - dist)
            dist += states(p)
            if dist >= 20:
                break
        if pad:
            out.append(Ins('s_nop %d' % (pad - 1)))
        out.append(ins)
        if ins.cls in VM:
            vmq.append(ins)
        elif ins.cls in LG or ins.cls == 'smem':
            lgq.append(ins)
    if report is not None:
        report(out)
    return [i.text if i.cls in ('label', 'dir') else '  ' + i.text for i in out]


def slots(ins):
    if ins.cls in ('vld', 'dma', 'vst', 'dsw'):
        return 3
    if ins.cls == 'valu':
        return 2 if ins.mn in TRANS else 1
    if ins.cls == 'dsr':
        return 1
    return 0


def estimate(out):
    t, mf = 0, -100
    for i in out:
        if i.cls in ('label', 'dir'):
            continue
        if i.cls == 'mfma':
            t = max(t, mf + 4 * i.passes)
            mf = t
            t += 4
        elif i.cls == 'valu' or i.cls == 'dsr':
            t = max(t, mf + 8) + (8 if i.mn in TRANS else 4)
        elif i.cls in ('vld', 'dma'):
            t += 12
        elif i.cls == 'dsw':
            t += 24 if '128' in i.mn else 16
        elif i.cls == 'vst':
            t += 28
        elif i.cls == 'nop':
            t += 4 * states(i)
        else:
            t += 4
    return t


class Q:
    def __init__(self, maxdr=2):
        self.items = []

    def add(self, stream, earliest, step=0.0):
        g = earliest
        for ins in stream:
            self.items.append((int(g), ins))
            if ins.cls not in ('pwait', 'salu'):
                g += step


def sched(mf, queues, log=None, cap=None):
    out = S()
    pos = [0] * len(queues)
    for g, m in enumerate(mf):
        m.target = 'hoist'
        out.append(m)
        full = cap(g) if cap else 2
        free, scal = full, True
        progress = True
        while progress:
            progress = False
            for qi, q in enumerate(queues):
                while pos[qi] < len(q.items):
                    e, ins = q.items[pos[qi]]
                    if ins.cls == 'label':
                        out.append(ins)
                        pos[qi] += 1
                        continue
                    if e > g:
                        break
                    if ins.cls == 'pwait':
                        if free < full or not scal:
                            break
                        out.append(ins)
                        pos[qi] += 1
                        scal = False
                        progress = True
                        continue
                    c = slots(ins)
                    if c == 0:
                        if free < full or not scal:
                            break
                        scal = False
                    elif c == 3:
                        if free < full or (not scal and full == 2):
                            break
                        free -= 2
                    elif c <= free:
                        free -= c
                    else:
                        break
                    out.append(ins)
                    if log is not None:
                        log[id(ins)] = g
                    pos[qi] += 1
                    progress = True
    left = S()
    for qi, q in enumerate(queues):
        left.extend(ins for e, ins in q.items[pos[qi]:])
    return out, left


def vr(b, n=1, k='v'):
    return '%s%d' % (k, b) if n == 1 else '%s[%d:%d]' % (k, b, b + n - 1)


def ar(b, n=1):
    return vr(b, n, 'a')


def sr(b, n=1):
    return vr(b, n, 's')
```

```python
import sys, os, struct
sys.path.insert(0, os.path.dirname(os.path.abspath(__file__)))
from asmlib import *

NAME = 'interleave_layers__spectral_fnet__swiglu_ffn__prompt'
W1P, W2P, Z1, Z2, X2, FLG, STP, PART = 0, 0x310000, 0x500000, 0x700000, 0x8C0000, 0xB00000, 0xB10000, 0xC00000
WSN = 0x1A00000
XBYTES = 1835008
OOB = 0x80000000
OPT = dict(stamps=0, clk=0, r1=8, rp=32, pre1=10, ev=4, ord=0, f0=4, late=1, ws0=60, cpf=1, pu=2, kd=46, ks=5, kw=6, np0=8, zexp=0, rep=0, fs=6, fl=35, cb=405, cc=485, cs=540, pl=25, c0=336, c1=450, pc=28, p1=40, nochk=0, hw2=0, nost=0)
SG = [112, 224, 260, 336, 392, 456, 490, 520, 584]
for a in sys.argv[2:]:
    k_, v_ = a.split('=')
    if k_ == 'sg':
        SG = [int(x) for x in v_.split(',')]
    else:
        OPT[k_] = int(v_)
MF = 'v_mfma_f32_16x16x32_bf16'
L_WT, L_H, L_ST, L_FIN, L_SX, LDS = 57344, 114688, 143360, 145408, 147456, 155648
RING = 48
LOG2E = 1.4426950408889634
SX_, WS, SO, SW, SD = 's[4:7]', 's[8:11]', 's[12:15]', 's[16:19]', 's[64:67]'
L16, ZR, AD1, AM, VO, VT, HO, HT, HS, HR, STW, STR, FINW, SXW, SXP, PD, PA = range(4, 21)
WR, ZO, BP = 248, 249, 250
BTR = 64
STV = 23
TMP, ACC, BIG, TRG = 24, 32, 96, 208
SPIN = 0x20000
FH = FLG + 0x8000
HG1, HG2 = PART, PART + 0x700000
FV, FD = 22, 21


def f2h(x):
    return '0x%08x' % struct.unpack('<I', struct.pack('<f', x))[0]


def stamp(k, i, force=False):
    if i == 15:
        return
    if OPT['stamps'] == 2 and i in (1, 2, 3, 4, 5, 6, 8, 10, 12) and not force:
        return
    if OPT['stamps'] == 3 and i in (8, 9, 10, 11, 12, 13) and not force:
        return
    if OPT['stamps'] != 3 and force == 3:
        return
    if OPT['stamps']:
        k('%s s[%d:%d]' % ('s_memtime' if OPT['clk'] else 's_memrealtime', 70 + 2 * i, 71 + 2 * i))


def stamp_save(k, lay):
    if OPT['stamps']:
        k('s_waitcnt lgkmcnt(0)')
        for i in range(15):
            k('v_writelane_b32 v%d, s%d, %d' % (STV, 70 + 2 * i, 16 * lay + i))


def srd(k, d, lo, n):
    if lo != d:
        k('s_mov_b32 s%d, s%d\ns_mov_b32 s%d, s%d' % (d, lo, d + 1, lo + 1))
    k('s_mov_b32 s%d, 0x%x\ns_mov_b32 s%d, 0x00020000' % (d + 2, n, d + 3))


def spin(k, name, load, cmp):
    k('s_mov_b32 s68, 0')
    k('%s:' % name)
    k(load)
    k('s_add_u32 s68, s68, 1\ns_waitcnt vmcnt(0)')
    k(cmp)
    k('''s_cmp_ge_u32 s68, 0x%x
    s_cbranch_scc1 %s_go
    s_nop 2
    s_cbranch_vccnz %s''' % (SPIN, name, name))
    k('%s_go:' % name)


SEQ = [(40, p * 4 * 28672 + 1024 * x) for p in range(3) for x in range(28)]
SEQ += [(38, 2048 * ks) for ks in range(14)]
SEQ += [(41, 1024 * x) for x in range(56)]
KS2 = [1, 2, 3, 4, 5, 6, 0]


def slot(n):
    return ar(64 + 4 * n, 4)


class WL:
    def __init__(self):
        self.win = {}
        self.cnt = 0

    def window(self, s, b, off):
        key = (b, off >> 12)
        if self.win.get(key) is None:
            reg = 46 + self.cnt % 4
            self.cnt += 1
            for x in self.win:
                if self.win[x] == reg:
                    self.win[x] = None
            self.win[key] = reg
            s('s_add_u32 s%d, s%d, %d' % (reg, b, off & ~4095))
        return self.win[key]

    def __call__(self, s, n, dst=None):
        b, off = SEQ[n]
        reg = self.window(s, b, off)
        return s('buffer_load_dwordx4 %s, v%d, %s, s%d offen offset:%d sc1' % (dst or slot(n), L16, WS, reg, off & 4095))


def raw_dma(k, soff):
    out = []
    for kp in range(7):
        for o in range(2):
            k('s_add_u32 m0, s39, %d' % (kp * 2048 + o * 1024 - 128 * kp))
            d = k('buffer_load_dwordx4 v%d, %s, s%d offen offset:%d lds' % (60 + o, SX_, soff, 128 * kp))
        out.append(d)
    return out


def raw_read(k, kp):
    for kap in range(2):
        r = k('ds_read_b128 %s, v%d offset:%d' % (ar(4 * (2 * kp + kap), 4), 26 + kap, 2048 * kp))
    return r


def raw_addr(k):
    k('''v_lshrrev_b32 v26, 1, v2
    v_xor_b32 v26, v3, v26
    v_lshlrev_b32 v26, 4, v26
    v_lshl_add_u32 v26, v2, 7, v26
    v_add_u32 v26, s39, v26
    v_xor_b32 v27, 64, v26''')


def a_trig(k):
    T = 232
    k('''v_lshl_add_u32 v{t}, s20, 4, v2
    v_cvt_f32_u32 v{t}, v{t}
    v_lshl_add_u32 v{t1}, v3, 8, s34
    v_xor_b32 v{t2}, 32, v{t1}
    v_cvt_f32_u32 v{t1}, v{t1}
    v_cvt_f32_u32 v{t2}, v{t2}
    v_mul_f32 v{t}, 0x3a000000, v{t}
    v_and_b32 v{t3}, 1, v2
    v_mul_u32_u24 v{t3}, 0x8000, v{t3}
    v_lshl_or_b32 v{t3}, v{t3}, 16, v{t3}'''.format(t=T, t1=T + 1, t2=T + 2, t3=T + 3))
    for bo in range(2):
        b = TRG + 12 * bo
        k('v_mul_f32 v%d, v%d, v%d' % (T + 4, T, T + 1 + bo))
        for r in range(1, 4):
            k('v_fmamk_f32 v%d, v%d, %s, v%d' % (T + 4 + r, T, f2h(64.0 * r), T + 4))
        for r in range(4):
            k('v_fract_f32 v%d, v%d' % (T + 4 + r, T + 4 + r))
        for r in range(4):
            k('v_sin_f32 v%d, v%d' % (T + 8 + r, T + 4 + r))
            k('v_cos_f32 v%d, v%d' % (T + 4 + r, T + 4 + r))
        for p in range(2):
            k('v_cvt_pk_bf16_f32 v%d, v%d, v%d' % (b + 4 + p, T + 8 + 2 * p, T + 9 + 2 * p))
            k('v_cvt_pk_bf16_f32 v%d, v%d, v%d' % (b + 2 + p, T + 4 + 2 * p, T + 5 + 2 * p))
        for p in range(2):
            k('v_xor_b32 v%d, 0x80008000, v%d' % (b + p, b + 4 + p))
        for p in range(6):
            k('v_xor_b32 v%d, v%d, v%d' % (b + 6 + p, T + 3, b + p))


def btrg(kind, h, ks):
    return BTR + ((kind * 2 + h) * 2 + ks) * 4


def b_trig(k):
    T = ACC
    k('''v_cvt_f32_u32 v%d, v2
    v_add_u32 v%d, s30, v2
    v_and_b32 v%d, 1, v3
    v_and_b32 v%d, 1, v2
    v_and_b32 v%d, 1, v%d
    v_cvt_f32_u32 v%d, v%d
    v_cvt_f32_u32 v%d, v3
    s_mov_b32 s35, 0x80008000
    v_mul_lo_u32 v%d, v%d, s35
    v_mul_lo_u32 v%d, v%d, s35
    v_mul_lo_u32 v%d, v%d, s35
    v_mul_f32 v%d, 0x3d000000, v%d
    v_mul_f32 v%d, 0xbd000000, v%d
    v_add_f32 v%d, 4.0, v%d
    v_add_f32 v%d, 4.0, v%d
    v_add_f32 v%d, 4.0, v%d''' % (T, T + 1, T + 2, T + 3, T + 4, T + 1, T + 1, T + 1, T + 8,
                                 T + 2, T + 2, T + 3, T + 3, T + 4, T + 4, T, T, T + 1, T + 1,
                                 T + 9, T + 8, T + 10, T + 9, T + 11, T + 10))
    for kind in range(2):
        for i in range(4):
            k('v_mul_f32 v%d, v%d, v%d' % (T + 12 + i, T + kind, T + 8 + i))
        for i in range(4):
            k('v_fract_f32 v%d, v%d' % (T + 12 + i, T + 12 + i))
        for i in range(4):
            k('v_sin_f32 v%d, v%d' % (T + 16 + i, T + 12 + i))
            k('v_cos_f32 v%d, v%d' % (T + 12 + i, T + 12 + i))
        for i in range(4):
            k('v_cvt_pk_bf16_f32 v%d, v%d, v%d' % (btrg(kind, 0, 0) + i, T + 12 + i, T + 16 + i))
        for i in range(4):
            k('v_xor_b32 v%d, v%d, v%d' % (btrg(kind, 0, 1) + i, T + 3 + kind, btrg(kind, 0, 0) + i))
        for i in range(8):
            k('v_xor_b32 v%d, v%d, v%d' % (btrg(kind, 1, 0) + i, T + 2, btrg(kind, 0, 0) + i))


def consts_a(k):
    k('''s_bfe_u32 s21, s2, 0x20001
    s_lshl_b32 s21, s21, 3
    s_bfe_u32 s35, s2, 0x30003
    s_add_u32 s21, s21, s35
    s_sub_u32 s26, 64, s21
    s_xor_b32 s28, s23, 1
    s_cmp_eq_u32 s21, 0
    s_cselect_b32 s26, 32, s26
    s_cselect_b32 s28, s23, s28
    s_cmp_eq_u32 s23, 0
    s_cselect_b32 s27, s21, s26
    s_mul_i32 s37, s20, %d
    s_lshl_b32 s35, s33, 12
    s_add_u32 s37, s37, s35
    s_lshl_b32 s35, s32, 6
    s_add_u32 s37, s37, s35
    s_add_u32 s37, s37, 0x%x
    s_lshl_b32 s1, s24, 10
    s_add_u32 s1, s1, s27
    s_mul_i32 s1, s1, 896
    s_mov_b32 s100, 128
    s_mov_b32 s101, 0
    s_mov_b32 s3, 0
    s_lshl_b32 s35, s20, 11
    s_add_u32 s35, s35, %d
    v_add_u32 v%d, s35, v%d
    v_xor_b32 v%d, 2048, v%d''' % (16 * 28672, Z1, L_SX, SXW, L16, SXP, SXW))


def consts_b(k):
    k('''s_and_b32 s22, s2, 1
    s_lshl_b32 s22, s22, 2
    s_lshr_b32 s35, s2, 6
    s_add_u32 s22, s22, s35
    s_cmp_eq_u32 s28, 0
    s_cselect_b32 s30, s21, s26
    s_min_u32 s30, s30, 1
    s_mul_i32 s31, s24, 7
    s_lshl_b32 s29, s21, 3
    s_add_u32 s29, s29, s22
    s_lshl_b32 s29, s29, 2
    s_mul_i32 s36, s27, 14
    s_add_u32 s36, s36, s31
    s_lshl_b32 s36, s36, 11
    s_add_u32 s36, s36, 0x%x
    s_mul_i32 s35, s22, 14
    s_add_u32 s38, s35, s23
    s_mul_i32 s38, s38, 28672
    s_lshl_b32 s34, s24, 10
    s_add_u32 s38, s38, s34
    s_add_u32 s40, s35, s20
    s_add_u32 s40, s40, 2
    s_mul_i32 s40, s40, 28672
    s_lshl_b32 s41, s22, 2
    s_add_u32 s41, s41, s20
    s_mul_i32 s41, s41, 57344
    s_add_u32 s41, s41, 0x%x
    s_mul_i32 s42, s29, 7168
    s_lshl_b32 s35, s20, 10
    s_add_u32 s42, s42, s35
    s_add_u32 s42, s42, 0x%x
    s_lshl_b32 s43, s21, 2
    s_add_u32 s43, s43, s20
    s_lshl_b32 s45, s43, 8
    s_add_u32 s45, s45, 0x%x
    s_mul_i32 s43, s43, 57344
    s_add_u32 s43, s43, 0x%x
    s_lshl_b32 s44, s29, 5
    s_lshl_b32 s35, s20, 2
    s_add_u32 s44, s44, s35
    s_add_u32 s44, s44, 0x%x
    s_mov_b32 s62, 0
    s_mov_b32 s50, 0
    s_mul_i32 s51, s24, 0xffff0000
    s_sub_u32 s52, 0, s24
    s_mov_b32 s53, s52''' % (Z1, W2P, HG1, FH, HG1, FH))
    k('''v_lshlrev_b32 v{ZR}, 2, v1
    v_add_u32 v{ZR}, s39, v{ZR}
    v_lshrrev_b32 v28, 1, v3
    v_and_b32 v29, 1, v3
    v_lshlrev_b32 v30, 4, v2
    v_lshl_add_u32 v30, v28, 8, v30
    v_lshl_add_u32 v30, v29, 3, v30
    s_mul_i32 s35, s23, 28672
    s_lshl_b32 s34, s31, 9
    s_add_u32 s35, s35, s34
    v_add_u32 v{AD1}, s35, v30
    v_xor_b32 v30, 0x108, v30
    s_mul_i32 s35, s28, 28672
    s_add_u32 s35, s35, {c42}
    s_sub_u32 s35, s35, s34
    v_add_u32 v{AM}, s35, v30
    s_mul_i32 s35, s24, 28672
    v_add_u32 v{VO}, s35, v{L16}
    s_sub_u32 s35, 28672, s35
    v_add_u32 v{VT}, s35, v{L16}
    v_add_u32 v{HR}, {LH}, v{L16}
    s_mul_i32 s34, s24, 14336
    s_lshl_b32 s35, s23, 3
    s_add_u32 s35, s35, s34
    v_add_u32 v{HS}, s35, v{HR}
    s_lshl_b32 s35, s23, 10
    s_lshl_b32 s54, s24, 3
    s_add_u32 s35, s35, s54
    s_add_u32 s35, s35, 1024
    s_add_u32 s54, s35, s34
    v_add_u32 v{HO}, s54, v{HR}
    s_add_u32 s54, s35, 14336
    s_sub_u32 s54, s54, s34
    v_add_u32 v{HT}, s54, v{HR}
    s_mul_i32 s35, s20, 7168
    v_add_u32 v{HR}, s35, v{HR}
    v_mov_b32 v30, s23
    v_mov_b32 v31, s28
    v_cmp_eq_u32 vcc, 0, v28
    v_cndmask_b32 v30, v31, v30, vcc
    v_lshl_add_u32 v30, v30, 1, v29
    v_lshl_add_u32 v30, v30, 4, v2
    v_lshlrev_b32 v{STR}, 5, v30
    v_add_u32 v{STR}, {LST}, v{STR}
    v_lshl_add_u32 v{STW}, v28, 4, v{STR}
    s_lshl_b32 s35, s24, 3
    v_add_u32 v{STW}, s35, v{STW}
    v_lshlrev_b32 v{FINW}, 3, v30
    v_add_u32 v{FINW}, {LFIN}, v{FINW}
    v_bfe_u32 v{PA}, v1, 2, 1
    v_and_b32 v30, 3, v1
    v_lshlrev_b32 v30, 2, v30
    v_lshl_add_u32 v{PA}, v{PA}, 7, v30
    v_lshlrev_b32 v0, 6, v0
    v_mov_b32 v{FD}, 0'''.format(ZR=ZR, AD1=AD1, AM=AM, VO=VO, VT=VT, HR=HR, HS=HS, HO=HO, HT=HT, STR=STR, STW=STW, FINW=FINW,
                                 PA=PA, FD=FD, L16=L16, c42=42 * 256, LH=L_H, LST=L_ST, LFIN=L_FIN))
    k('''s_mul_i32 s56, s22, 1792
    s_lshl_b32 s29, s27, 1
    s_add_u32 s29, s29, s24
    s_mul_i32 s29, s29, 14336
    s_add_u32 s29, s29, 0x%x
    s_add_u32 s55, s29, s56
    s_mov_b32 s61, 16
    s_mov_b32 s63, 256
    s_add_u32 s56, s56, s39
    s_mov_b32 s59, 0x05040c0c
    s_cmp_lt_u32 s22, 4
    s_cselect_b32 s57, -242, 0
    s_cselect_b32 s60, 0x03020c0c, s59
    s_cselect_b32 s59, s59, 0x07060c0c
    s_cmp_eq_u32 s22, 4
    s_cselect_b32 s58, -242, s57
    s_cmp_eq_u32 s22, 0
    s_cselect_b32 s58, 7168, s58
    s_sub_u32 s69, s57, s58
    s_add_u32 s57, s57, 1024
    s_mov_b32 s54, %s''' % (X2, f2h(LOG2E * LOG2E)))
    if OPT['stamps']:
        k('v_mov_b32 v%d, 0' % STV)


def w2_decode(k, r, src, dst):
    k("""s_lshr_b32 s25, s{r}, 3
    s_and_b32 s{r}, s{r}, 7
    s_mul_i32 s{src}, s25, 28672
    s_mul_i32 s35, s{r}, 112
    s_add_u32 s{src}, s{src}, s35
    s_mul_i32 s35, s25, 9363
    s_lshr_b32 s35, s35, 16
    s_mul_i32 s34, s35, 7
    s_sub_u32 s34, s25, s34
    s_cmp_eq_u32 s34, 0
    s_cselect_b32 s34, 7, s34
    s_sub_u32 s34, s34, 1
    s_lshl_b32 s34, s34, 1
    s_and_b32 s25, s35, 1
    s_add_u32 s34, s34, s25
    s_lshr_b32 s35, s35, 1
    s_lshl_b32 s{r}, s{r}, 2
    s_add_u32 s35, s35, s{r}
    s_mul_i32 s35, s35, 14
    s_add_u32 s35, s35, s34
    s_lshl_b32 s35, s35, 12
    s_add_u32 s{dst}, s35, 0x{w2p:x}""".format(r=r, src=src, dst=dst, w2p=W2P))


def tr_addr(k, d, base):
    k("""v_bfe_u32 v{d}, v1, 2, 2
    v_lshl_add_u32 v{d}, v3, 3, v{d}
    v_lshlrev_b32 v{d}, 3, v{d}
    v_and_b32 v{e}, 3, v1
    v_add_u32 v{d}, v{d}, v{e}
    v_lshl_add_u32 v{d}, v{d}, 4, s{b}""".format(d=d, e=d + 1, b=base))


def tr_read(k, d, adr, off):
    for t in range(4):
        for hh in range(2):
            k('ds_read_b64_tr_b16 %s, v%d offset:%d' % (vr(d + 4 * t + 2 * hh, 2), adr, off + 512 * hh + 64 * (t >> 1) + 8 * (t & 1)))


def gen():
    k = S()
    k('.p2align 8\n.globl %s_kernel\n.type %s_kernel,@function\n%s_kernel:' % (NAME, NAME, NAME))
    stamp(k, 0)
    k("""s_load_dwordx2 s[4:5], s[0:1], 0
    s_load_dwordx8 s[56:63], s[0:1], 48
    s_load_dwordx4 s[64:67], s[0:1], 80
    s_cmp_ge_u32 s2, 256
    s_cbranch_scc1 k_end
    v_lshrrev_b32 v2, 6, v0
    v_and_b32 v1, 63, v0
    v_readfirstlane_b32 s20, v2
    v_lshrrev_b32 v3, 4, v1
    v_lshrrev_b32 v62, 3, v1
    v_and_b32 v63, 7, v1
    v_xor_b32 v60, v63, v3
    v_lshlrev_b32 v60, 4, v60
    s_mov_b32 s35, 57344
    v_mad_u32_u24 v60, v62, s35, v60
    v_xor_b32 v61, 64, v60
    v_add_u32 v61, 0x70000, v61
    s_and_b32 s32, s2, 7
    s_lshl_b32 s32, s32, 2
    s_bfe_u32 s35, s2, 0x20003
    s_add_u32 s32, s32, s35
    s_lshr_b32 s33, s2, 5
    s_lshr_b32 s23, s20, 1
    s_and_b32 s24, s20, 1
    s_mul_i32 s39, s20, 14336
    s_mov_b32 s6, 0x%x
    s_mov_b32 s7, 0x00020000
    s_cmp_ge_u32 s2, 224
    s_cbranch_scc1 k_idle1""" % XBYTES)
    rest = """v_lshlrev_b32 v63, 4, v63
    v_and_b32 v2, 15, v1
    v_lshlrev_b32 v%d, 4, v1
    s_mov_b32 s19, 0x00020000""" % L16
    PW = 64
    k("""s_lshl_b32 s43, s23, 5
    s_lshl_b32 s35, s24, 10
    s_add_u32 s43, s43, s35
    s_add_u32 s43, s43, s32
    s_mul_i32 s43, s43, 896
    s_mov_b32 s40, s33""")
    k0, k = k, S()
    k(rest)
    k("""s_lshl_b32 s45, s2, 2
    s_add_u32 s45, s45, s20
    s_mul_i32 s44, s20, 7168
    s_add_u32 s44, s44, %d
    s_mov_b32 s18, %d
    s_cmp_ge_u32 s2, 196
    s_cbranch_scc1 k_u2
    s_lshr_b32 s22, s45, 1
    s_mul_i32 s25, s22, 2341
    s_lshr_b32 s25, s25, 16
    s_mul_i32 s35, s25, 28
    s_sub_u32 s22, s22, s35
    s_lshl_b32 s46, s25, 5
    s_cmp_lt_u32 s25, 7
    s_addc_u32 s46, s46, 0
    s_mul_i32 s46, s46, 3584
    s_lshl_b32 s35, s22, 7
    s_add_u32 s46, s46, s35
    s_mul_i32 s47, s22, 56
    s_add_u32 s47, s47, s25
    s_lshl_b32 s47, s47, 1
    s_add_u32 s47, s47, s24
    s_lshl_b32 s47, s47, 10
    s_mov_b32 s48, 28672
    s_mov_b32 s49, 3584
    s_cmp_eq_u32 s25, 7
    s_cselect_b32 s21, %d, 0
    s_branch k_u3
    k_u2:
    s_sub_u32 s22, s45, 784""" % (L_H, 448 * 3584, 224 * 3584))
    w2_decode(k, 22, 46, 47)
    k("""s_mov_b32 s48, 1024
    s_mov_b32 s49, 896
    s_mov_b32 s21, 0
    k_u3:
    v_mad_u32_u24 v63, v62, s49, v63
    v_add_u32 v63, s46, v63
    v_cmp_eq_u32 vcc, 0, v62
    v_mov_b32 v62, s21
    v_cndmask_b32 v62, 0, v62, vcc
    v_sub_u32 v62, v63, v62
    s_lshl_b32 s49, s49, 3""")
    srd(k, 8, 66, WSN)
    srd(k, 12, 62, XBYTES)
    srd(k, 64, 64, 256)
    dec, k = k, k0
    fw, fx, fp = S(), S(), S()
    fw("""s_cmp_eq_u32 s24, 0
    s_cselect_b32 s16, s56, s58
    s_cselect_b32 s17, s57, s59
    s_cmp_ge_u32 s2, 196
    s_cselect_b32 s16, s60, s16
    s_cselect_b32 s17, s61, s17""")
    for n in range(4):
        fw('s_add_u32 m0, s44, %d' % (1024 * n))
        if n > 1:
            fw('s_mul_i32 s46, s49, %d' % n)
        wd = fw('buffer_load_dwordx4 v%d, %s, %s offen lds' % (63 if n else 62, SW, ('0', 's49', 's46', 's46')[n]))
    stamp(fw, 12, 3)
    for kp in range(7):
        if kp:
            fx("""s_add_u32 s40, s40, 1
            s_cmp_eq_u32 s40, 7
            s_cselect_b32 s40, 0, s40""")
        fx("""s_lshl_b32 s42, s40, 11
        s_add_u32 m0, s42, s39
        s_lshl_b32 s41, s40, 7
        s_add_u32 s41, s41, s43""")
        fx('buffer_load_dwordx4 v60, %s, s41 offen lds' % SX_)
        fx('s_add_u32 m0, m0, 1024')
        xl = fx('buffer_load_dwordx4 v61, %s, s41 offen lds' % SX_)
    stamp(fx, 13, 3)
    if OPT['ord']:
        fx.extend(fw)
    m = S()
    T = BIG
    m("""s_lshl_b32 s35, s33, 5
    s_lshl_b32 s34, s24, 4
    s_add_u32 s35, s35, s34
    s_add_u32 s35, s35, 1
    v_add_u32 v28, s35, v2
    v_and_b32 v31, 1, v28
    v_cvt_f32_u32 v28, v28
    v_mul_u32_u24 v31, 0x8000, v31
    v_mul_f32 v28, %s, v28
    v_lshl_or_b32 v31, v31, 16, v31
    s_lshl_b32 s35, s23, 7
    v_lshl_add_u32 v29, v3, 3, s35
    v_cvt_f32_u32 v29, v29
    v_mul_f32 v29, v28, v29
    s_mul_i32 s35, s24, 28672
    s_lshl_b32 s34, s23, 12
    s_add_u32 s35, s35, s34
    s_add_u32 s35, s35, %d
    v_add_u32 v30, s35, v%d""" % (f2h(-1 / 448), L_WT, L16))
    for kk in range(4):
        B = T + 32 * (kk & 1)
        n = 8 if kk < 3 else 4
        if kk == 3:
            m('s_mul_i32 s35, s23, %s\ns_mul_i32 s34, s23, 4088\nv_fma_f32 v29, v28, s35, v29\nv_subrev_u32 v30, s34, v30' % f2h(-124.0))
        for el in range(n):
            m('v_fmamk_f32 v%d, v28, %s, v29' % (B + el, f2h(32.0 * kk + el)))
        for el in range(n):
            m('v_sin_f32 v%d, v%d' % (B + n + el, B + el))
            m('v_cos_f32 v%d, v%d' % (B + el, B + el))
        for x in range(n):
            m('v_cvt_pk_bf16_f32 v%d, v%d, v%d' % (B + 16 + x, B + 2 * x, B + 2 * x + 1))
        for x in range(n):
            m('v_xor_b32 v%d, v31, v%d' % (B + 24 + x, B + 16 + x))
        for fl in range(2):
            for p in range(2):
                m('ds_write_b%d v30, %s offset:%d' % (16 * n, vr(B + 16 + 8 * fl + n // 2 * p, n // 2), 14336 * p + 1024 * kk + 7168 * fl))
    tr_addr(m, 88, 44)
    raw_addr(m)
    i0 = [i for i, x in enumerate(fx) if x.cls == 'dma'][OPT['f0'] - 1] + 1
    k.extend(fx[:4])
    k('s_waitcnt lgkmcnt(0)')
    stamp(k, 8, 3)
    k.extend(fx[4:i0])
    stamp(k, 10, 3)
    k.extend(dec)
    k.extend(weave(m, S(fx[i0:]), only=('valu',), every=OPT['ev'], start=OPT['ws0']))
    stamp(k, 1)

    def w_out(k):
        for t in range(4):
            k('buffer_store_dwordx4 %s, v%d, %s, s47 offen sc1' % (vr(PW + 4 * t, 4), L16, WS)).opt = True
            if t < 3:
                k('s_add_u32 s47, s47, s48')
    consts_a(k)
    stamp(k, 9, 3)
    k.wait(xl)
    stamp(k, 11, 3)
    for kp in range(7):
        raw_read(k, kp)
    if not OPT['ord']:
        k.extend(fw)
    k.extend(fp)
    stamp(k, 2, 3)
    k('s_waitcnt lgkmcnt(0)\ns_barrier')
    k0, k = k, S()

    k('k_idle1:')
    k.reset()
    k(rest)
    if OPT['cpf']:
        k("""s_getpc_b64 s[26:27]
        k_pc:
        s_bfe_u32 s21, s2, 0x20003
        s_lshl_b32 s21, s21, 2
        s_add_u32 s21, s21, s20
        s_lshl_b32 s21, s21, 12
        v_lshl_add_u32 v40, v1, 6, s21
        v_min_u32 v40, k_last - %s_kernel, v40
        s_sub_u32 s26, s26, k_pc - %s_kernel
        s_subb_u32 s27, s27, 0
        global_load_dword v50, v40, s[26:27]""" % (NAME, NAME))
    k("""s_sub_u32 s21, s2, 224
    s_lshl_b32 s21, s21, 2
    s_add_u32 s21, s21, s20
    s_cmp_eq_u32 s21, 127
    s_cselect_b32 s22, 0, 0x%x
    v_mov_b32 v28, s22
    v_mov_b32 v32, 0
    v_mov_b32 v33, 0
    v_mov_b32 v34, 0
    v_mov_b32 v35, 0
    v_mov_b32 v36, 1
    v_mov_b32 v80, -1
    v_lshlrev_b32 v37, %d, v1
    v_add_u32 v37, s22, v37
    v_lshlrev_b32 v38, 7, v1
    v_add_u32 v38, s22, v38
    s_mov_b32 s49, 896
    v_mad_u32_u24 v63, v62, s49, v63
    s_add_u32 s55, s39, %d
    s_mov_b32 s18, %d""" % (OOB, OPT['fs'], L_WT, 1792 * 896))
    for n in range(3):
        k('s_add_u32 s22, s21, %d' % (112 + 128 * n))
        w2_decode(k, 22, 26 + n, 46 + n)
    k("""s_cmp_ge_u32 s21, 80
    s_cselect_b32 s28, 0x%x, s28
    s_cselect_b32 s48, 0x%x, s48
    s_waitcnt lgkmcnt(0)
    s_mov_b32 s16, s60
    s_mov_b32 s17, s61""" % (OOB, OOB))
    stamp(k, 8, 3)
    srd(k, 8, 66, WSN)
    srd(k, 12, 62, XBYTES)
    srd(k, 64, 64, 256)
    for x in range(4):
        k('s_mov_b32 s35, 0x%x\nbuffer_store_dword v80, v37, %s, s35 offen sc1' % (FLG + (64 * x << OPT['fs']), WS))
    for x in range(4):
        zs = k('s_mov_b32 s35, 0x%x\nbuffer_store_dwordx4 v[32:35], v38, %s, s35 offen sc1' % (FH + 8192 * x, WS))
    wd = []
    for n in range(3):
        k('v_add_u32 v%d, s%d, v63' % (40 + n, 26 + n))
        for z in range(4):
            k('s_add_u32 m0, s55, %d' % (4096 * n + 1024 * z))
            k('s_mov_b32 s35, %d' % (7168 * z))
            d = k('buffer_load_dwordx4 v%d, %s, s35 offen lds' % (40 + n, SW))
        wd.append(d)
    stamp(k, 9, 3)
    k.wait(zs)
    k('buffer_store_dword v36, v28, %s, 0 offen sc1' % SD)
    stamp(k, 1)
    tr_addr(k, 44, 55)
    consts_a(k)
    raw_dma(k, 1)
    stamp(k, 2, 3)
    for n in range(3):
        k('v_add_u32 v%d, s%d, v%d' % (40 + n, 46 + n, L16))
        k.wait(wd[n])
        tr_read(k, BIG + 16 * n, 44, 4096 * n)
    for n in range(3):
        for t in range(4):
            k('buffer_store_dwordx4 %s, v%d, %s, 0 offen offset:%d sc1' % (vr(BIG + 16 * n + 4 * t, 4), 40 + n, WS, 1024 * t))
    stamp(k, 10, 3)
    k('s_branch k_l1i')

    kidle, k = k, S()
    k('k_l2:')
    k("""s_lshl_b32 s0, s23, 5
    s_add_u32 s0, s0, s32
    s_lshl_b32 s0, s0, 1
    s_add_u32 s0, s0, s24
    s_mul_i32 s0, s0, 14336
    s_add_u32 s0, s0, 0x%x
    s_cmp_ge_u32 s2, 224
    s_cselect_b32 s0, s29, s0
    s_mov_b32 s1, s29
    v_mov_b32 v60, v%d
    v_add_u32 v61, 1024, v%d
    v_lshlrev_b32 v28, 7, v1
    v_add_u32 v29, 6144, v28""" % (X2, L16, L16))
    spin(k, 'k_pr', 'buffer_load_dword v30, v28, %s, s0 offen sc1\nbuffer_load_dword v31, v29, %s, s0 offen sc1' % (WS, WS),
         'v_max_u32 v30, v30, v31\nv_cmp_eq_u32 vcc, -1, v30')
    stamp(k, 0)
    k('s_cmp_ge_u32 s2, 224\ns_cbranch_scc1 k_res')
    xl2 = []
    for ks in range(14):
        if ks and ks % 4 == 0:
            k('s_add_u32 s0, s0, 4096')
        xl2.append(k('buffer_load_dwordx4 %s, v%d, %s, s0 offen offset:%d sc1' % (ar(4 * ks, 4), L16, WS, 1024 * (ks & 3))))
    R1, RP = OPT['r1'], OPT['rp']
    stamp(k, 1)
    k('s_branch k_kloop')
    kl2, k = k, k0

    k('k_kloop:')
    k.append(Seed(xl2))
    k('v_add_u32 v%d, %d, v%d' % (WR, L_WT, L16))
    T0, G0, S0, ONES, ZA = 32, 48, 52, 56, 232

    def wf(ks, t):
        return vr(BIG + 4 * ((4 * ks + t) % 28), 4)

    def wread(s, ks, t):
        return s('ds_read_b128 %s, v%d offset:%d' % (wf(ks, t), WR, 14336 * t + 1024 * ks))
    NP0 = OPT['np0']
    for n in range(NP0):
        wread(k, n // 4, n % 4)
    for i in range(4):
        k('v_mov_b32 v%d, 0x3f803f80' % (ONES + i))
    k("""s_lshl_b32 s34, s23, 5
    s_add_u32 s34, s34, s32
    s_lshl_b32 s35, s24, 10
    s_add_u32 s34, s34, s35
    s_mov_b32 s35, %s
    s_mov_b32 s68, 28672""" % f2h(1 / 448))
    stamp(k, 3)
    q0, q3, q4, f = Q(), Q(), Q(), S()
    for n in range(NP0, 28):
        wread(f, n // 4, n % 4)
    q0.add(f, 0)
    f = S()
    f('v_mov_b32 v28, %s\nv_mul_u32_u24 v%d, 80, v3' % (f2h(1e-5), BP))
    if OPT['zexp']:
        f('v_and_b32 v30, 8, v2\nv_lshlrev_b32 v30, 3, v30\nv_lshl_add_u32 v30, v3, 4, v30\nv_lshl_add_u32 v30, s32, 6, v30\nv_and_b32 v29, 7, v2\nv_mad_u32_u24 v%d, v29, s68, v30' % ZO)
        f('v_add_u32 v251, %d, v%d' % (8 * 28672 - 2048, ZO))
    else:
        f('v_lshlrev_b32 v30, 4, v3\nv_mad_u32_u24 v%d, v2, s68, v30' % ZO)
    f('v_xor_b32 v29, 4096, v%d\nv_xor_b32 v30, 4096, v%d' % (SXW, SXP))
    a_trig(f)
    q4.add(f, 0)
    f = S()
    for n in range(14):
        f('s_add_u32 m0, s39, %d' % (1024 * n))
        if n and n & 1 == 0:
            f('s_add_u32 s1, s1, s100')
        f('buffer_load_dwordx4 v%d, %s, s1 offen sc1 lds' % (60 + (n & 1), SX_))
    q3.add(f, OPT['kd'], OPT['ks'])
    LAG = 4
    mf, q1, q2 = S(), Q(), Q()
    for st in range(14 + LAG):
        if st < 14:
            x = ar(4 * st, 4)
            mf('%s %s, %s, %s, %s' % (MF, vr(G0, 4), x, x, vr(G0, 4) if st else '0'))
            mf('%s %s, %s, %s, %s' % (MF, vr(S0, 4), x, vr(ONES, 4), vr(S0, 4) if st else '0'))
            if st == 13:
                f = S()
                for r in range(4):
                    f('ds_bpermute_b32 v%d, v%d, v%d offset:%d' % (TMP + r, BP, G0 + r, 4 * r))
                for r in range(4):
                    f('v_mul_f32 v%d, s35, v%d' % (S0 + r, S0 + r))
                for r in range(4):
                    f('v_fma_f32 v%d, -v%d, v%d, v28' % (S0 + r, S0 + r, S0 + r))
                q2.add(f, len(mf) + 1)
                f = S()
                for r in range(4):
                    f('v_fma_f32 v%d, v%d, s35, v%d' % (TMP + r, TMP + r, S0 + r))
                for r in range(4):
                    f('v_rsq_f32 v%d, v%d' % (TMP + r, TMP + r))
                f('v_add_f32 v62, v%d, v%d\nv_add_f32 v63, v%d, v%d\nv_cmp_u_f32 vcc, v62, v63' % (TMP, TMP + 1, TMP + 2, TMP + 3))
                q2.add(f, len(mf) + 10)
        ks = st - LAG
        if ks >= 0:
            for t in range(4):
                d = vr(T0 + 4 * t, 4)
                mf('%s %s, %s, %s, %s' % (MF, d, ar(4 * ks, 4), wf(ks, t), d if ks else '0'))
                if ks < 7:
                    f = S()
                    wread(f, ks + 7, t)
                    q1.add(f, len(mf) - 1)
    o, left = sched(mf, [q2, q0, q1, q3, q4])
    g10 = [j for j, x in enumerate(o) if x.cls == 'mfma'][8 + 6 * 6]
    assert not any(x.cls == 'dma' for x in o[:g10])
    o[g10:g10] = [Ins('s_cmp_eq_u32 s3, 0'), Ins('s_cbranch_scc1 k_x10'), Ins('s_waitcnt vmcnt(0)'), Ins('k_x10:')]
    k.extend(o)
    id4 = {id(x) for e, x in q4.items}
    k.extend(x for x in left if x.cls == 'valu' and id(x) not in id4)
    late = S(x for x in left if x.cls != 'valu')
    nd = 14 - sum(x.cls == 'dma' for x in late)
    if OPT['rep']:
        print('K loop left', len(left), 'dma in loop', nd)
    k('s_cbranch_vccnz k_xre\nk_xok:')
    if OPT['late'] == 1:
        k('s_cmp_lg_u32 s3, 0\ns_cbranch_scc1 k_w1\ns_waitcnt vmcnt(%d)' % nd)
        tr_read(k, PW, 88, 0)
        k('k_w1:')
    k1, k = k, S()
    stamp(k, 4)
    AF = BIG
    wr = []
    for nu in range(2):
        for p in range(2):
            t = T0 + 8 * nu + 4 * p
            for r in range(2):
                k('v_pk_mul_f32 %s, %s, %s' % (vr(t + 2 * r, 2), vr(t + 2 * r, 2), vr(TMP + 2 * r, 2)))
        for p in range(2):
            t = T0 + 8 * nu + 4 * p
            for r in range(2):
                k('v_cvt_pk_bf16_f32 v%d, v%d, v%d' % (AF + 4 * nu + 2 * p + r, t + 2 * r, t + 2 * r + 1))
        wr.append(k('ds_write_b128 v%d, %s offset:%d' % (SXW, vr(AF + 4 * nu, 4), 1024 * nu)))

    def st1(x):
        for nu in range(2):
            for z in range(2):
                d = vr(ZA + 8 * nu + 4 * z, 4)
                k('%s %s, %s, %s, %s' % (MF, d, vr(AF + 8 * x + 4 * nu, 4), vr(TRG + 6 * x + (2 if z == 0 else 0), 4), d if x else '0'))
    k.extend(x for x in left if id(x) in id4)
    k.wait(*wr)
    if OPT['late'] == 1:
        k('s_cmp_lg_u32 s3, 0\ns_cbranch_scc1 k_w2')
        w_out(k)
        k('k_w2:')
    k('s_barrier')
    for x in (1, 2, 3):
        for nu in range(2):
            k('ds_read_b128 %s, v%d offset:%d' % (vr(AF + 8 * x + 4 * nu, 4), (None, SXP, 29, 30)[x], 1024 * nu))
    for x in range(4):
        st1(x)
    k1.extend(weave(k, late, only=('valu', 'mfma'), every=OPT['kw']))
    k = k1
    for nu in range(2):
        for r in range(4):
            k('v_cvt_pk_bf16_f32 v%d, v%d, v%d' % (ACC + 20 + 4 * nu + r, ZA + 8 * nu + r, ZA + 8 * nu + 4 + r))
        k('buffer_store_dwordx4 %s, v%d, %s, s37 offen offset:%d sc1' % (vr(ACC + 20 + 4 * nu, 4), 251 if nu and OPT['zexp'] else ZO, WS, 2048 * nu))
    stamp(k, 5)
    k('s_cmp_eq_u32 s3, 0\ns_cbranch_scc1 k_l1t')
    k('k_a2t:')
    wl = WL()
    for n in range(RP + R1, RING):
        wl(k, n)
    k('v_add_u32 v28, s39, v%d\ns_waitcnt vmcnt(%d)' % (L16, RING - RP - R1 + 2))
    for n in range(14):
        k('ds_read_b32 v%d, v28 offset:%d' % (232 + n, 1024 * n))
    for n in range(7):
        k('v_max3_u32 v232, v232, v%d, v%d' % (233 + 2 * n, min(245, 234 + 2 * n)))
    k("""v_cmp_eq_u32 vcc, -1, v232
    s_cbranch_vccnz k_rre
    s_branch k_join""")
    k('k_l1t:')
    k.reset()
    if OPT['late'] == 2:
        k('s_waitcnt vmcnt(16)')
        tr_read(k, PW, 88, 0)
        w_out(k)
    k('k_l1i:')
    k('v_mov_b32 v28, 0\nbuffer_load_dword v63, v28, %s, 0 offen sc1' % SD)
    k("""s_lshl_b32 s34, s2, %d
    v_mov_b32 v53, s34
    v_mov_b32 v52, 0x%x
    v_cmp_eq_u32 vcc, 0, v0
    v_cndmask_b32 v53, v52, v53, vcc
    v_cmp_eq_u32 vcc, 0, v1
    v_cndmask_b32 v%d, v52, v1, vcc
    v_mov_b32 v52, 1""" % (OPT['fs'], OOB, FV))
    consts_b(k)
    k("""s_mov_b32 s35, 0x%x
    s_waitcnt vmcnt(0)
    v_cmp_eq_u32 vcc, 0, v63
    v_mov_b32 v28, 0
    s_nop 4
    s_cbranch_vccz k_flagA""" % FLG)
    spin(k, 'k_pz', 'buffer_load_dword v63, v28, %s, 0 offen sc1' % SD, 'v_cmp_eq_u32 vcc, 0, v63')
    k('k_flagA:')
    k('s_barrier')
    k('buffer_store_dword v52, v53, %s, s35 offen sc1' % WS)
    stamp(k, 6)
    k("""s_lshl_b32 s35, s2, 2
    s_add_u32 s35, s35, s20
    s_mul_i32 s35, s35, 3584
    s_add_u32 s35, s35, 0x%x
    v_mov_b32 v56, -1
    v_mov_b32 v57, -1
    v_mov_b32 v58, -1
    v_mov_b32 v59, -1""" % Z2)
    for o_ in (0, 1024, 2048, 2560):
        k('buffer_store_dwordx4 v[56:59], v%d, %s, s35 offen offset:%d sc1' % (L16, WS, o_))
    b_trig(k)
    raw_addr(k)
    for kp in range(7):
        raw_read(k, kp)
    k('v_add_u32 v28, s39, v%d\ns_waitcnt lgkmcnt(0)' % L16)
    for ks in range(14):
        k('ds_write_b128 v28, %s offset:%d' % (ar(4 * ks, 4), 1024 * ks))
    k('s_waitcnt lgkmcnt(0)')
    k('k_join:')
    k('s_barrier')
    stamp(k, 2 if OPT['stamps'] == 1 else 15)
    SUM, SQ, SV = ACC, ACC + 4, ACC + 8
    k('''v_and_b32 v30, 1, v3
    v_mul_u32_u24 v30, 240, v30
    v_add3_u32 v30, v30, v%d, 8
    s_mul_i32 s35, s28, 28672
    v_lshl_add_u32 v31, v2, 4, s35''' % AD1)
    rdq = []
    for u in range(7):
        for h in range(2):
            b = BIG + 16 * u + 4 * h
            k('ds_read_b64 %s, v%d offset:%d' % (vr(b, 2), AD1, 512 * u + 14336 * h))
            k('ds_read_b32 v%d, v30 offset:%d' % (b + 3, 512 * u + 14336 * h))
            k('ds_read_b64 %s, v%d offset:%d' % (vr(b + 10, 2), AM, 512 * (6 - u) + 14336 * h))
        if u == 6:
            for h in range(2):
                k('ds_read_b32 v%d, v31 offset:%d' % (SV + h, 14336 * h))
        for uu in ([u - 2] if u < 6 else [4, 5, 6]):
            if uu < 0:
                continue
            lo = lambda d, x: k('v_lshlrev_b32 v%d, 16, v%d' % (d, x))
            hi = lambda d, x: k('v_and_b32 v%d, 0xffff0000, v%d' % (d, x))
            for h in range(2):
                b = BIG + 16 * uu + 4 * h
                hi(b + 2, b + 1); lo(b + 1, b + 1); hi(b, b); lo(b + 3, b + 3)
                b += 8
                hi(b, b + 3); lo(b + 1, b + 3); lo(b + 3, b + 2); hi(b + 2, b + 2)
    for h in range(2):
        k('v_lshlrev_b32 v%d, 16, v%d' % (SV + h, SV + h))
    GP = 44
    k("""s_cmp_eq_u32 s3, 0
    s_cselect_b32 s35, 0x{flg:x}, s36
    s_cselect_b32 s34, 0x{oob:x}, 0
    s_cselect_b32 s68, -1, 0xfc0
    v_mov_b32 v28, 0x{oob:x}
    v_and_b32 v{p}, s68, v0
    v_add_u32 v{p1}, s34, v{p}
    v_add_u32 v{p3}, 10240, v{p1}
    v_add_u32 v{p2}, 8192, v{p1}
    v_add_u32 v{p1}, 4096, v{p1}""".format(flg=FLG, oob=OOB, p=GP, p1=GP + 1, p2=GP + 2, p3=GP + 3))
    spin(k, 'k_pg', '\n'.join('buffer_load_dword v%d, v%d, %s, s35 offen sc1' % (GP + 4 + n, GP + n, WS) for n in range(4)),
         '\n'.join('v_cmp_eq_u32 vcc, -1, v%d\nv_cndmask_b32 v%d, v28, v%d, vcc' % (GP + 4 + n, GP + n, GP + n) for n in range(4)) +
         '\nv_max3_u32 v%d, v%d, v%d, v%d\nv_max_u32 v%d, v%d, v%d\nv_cmp_eq_u32 vcc, -1, v%d' % (GP + 4, GP + 4, GP + 5, GP + 6, GP + 4, GP + 4, GP + 7, GP + 4))
    k('s_barrier')
    stamp(k, 7)
    slow = S()

    def prologue(k):
        wl = WL()
        nl = [0]

        def wload(s, cnt=1):
            for _ in range(cnt):
                if nl[0] < RP:
                    wl(s, nl[0])
                    nl[0] += 1
        dma = []
        for u in range(7):
            if u % 2 == 0:
                k('s_add_u32 m0, s39, %d\ns_add_u32 s35, s36, %d' % (2048 * u, 2048 * u))
            for ks in range(2):
                d = k('buffer_load_dwordx4 v%d, %s, s35 offen offset:%d sc1 lds' % (L16, WS, (u % 2) * 2048 + 1024 * ks))
            dma.append(d)
        wload(k, OPT['pre1'])

        def zf(u):
            return TRG + 8 * (u % 3)

        def unit_rd(u):
            return '\n'.join('ds_read2st64_b32 %s, v%d offset0:%d offset1:%d' % (vr(zf(u) + 2 * x, 2), ZR, 8 * u + 2 * x, 8 * u + 2 * x + 1) for x in range(4))

        def unit_pre(s, u):
            s.wait(dma[u])
            s(unit_rd(u))

        def unit_chk(s, u):
            z = zf(u)
            c = """v_max3_u32 v44, v%d, v%d, v%d
            v_max3_u32 v45, v%d, v%d, v%d
            v_max3_u32 v44, v44, v%d, v%d
            v_max_u32 v44, v44, v45
            v_cmp_eq_u32 vcc, -1, v44""" % tuple(range(z, z + 8))
            s(c)
            s('s_cbranch_vccnz k_zs%d\nk_zb%d:' % (u, u))
            slow('k_zs%d:\ns_add_u32 m0, s39, %d\ns_add_u32 s35, s36, %d' % (u, 2048 * u, 2048 * u))
            spin(slow, 'k_zp%d' % u, '\n'.join('buffer_load_dwordx4 v%d, %s, s35 offen offset:%d sc1 lds' % (L16, WS, 1024 * ks) for ks in range(2)),
                 unit_rd(u) + '\ns_waitcnt lgkmcnt(0)\n' + c)
            slow('s_branch k_zb%d' % u)

        def unit_stats(s, u):
            b = BIG + 16 * u
            if u == 6:
                s('v_cndmask_b32 v%d, v%d, v%d, s[50:51]' % (b + 11, b + 11, SV))
                s('v_cndmask_b32 v%d, v%d, v%d, s[50:51]' % (b + 15, b + 15, SV + 1))
            for r in range(4):
                for sl in range(4):
                    x = b + 4 * sl + r
                    if u == 0 and r == 0:
                        s('v_mul_f32 v%d, v%d, v%d' % (SQ + sl, x, x))
                    else:
                        s('v_add_f32 v%d, v%d, v%d' % (SUM + sl, x - 1 if u == 0 and r == 1 else SUM + sl, x))
                        s('v_fmac_f32 v%d, v%d, v%d' % (SQ + sl, x, x))
        unit_pre(k, 0)
        unit_chk(k, 0)
        stamp(k, 8)
        for u in range(7):
            m, f = S(), S()
            for ks in range(2):
                for sl in range(4):
                    d = vr(BIG + 16 * u + 4 * sl, 4)
                    m('%s %s, %s, %s, %s' % (MF, d, vr(zf(u) + 4 * ks, 4), vr(btrg(sl >> 1, sl & 1, ks), 4), d))
            if u < 6:
                unit_pre(f, u + 1)
            if u:
                unit_stats(f, u - 1)
            wload(f, OPT['pu'])
            k.extend(weave(m, f, per=4))
            if u < 6:
                unit_chk(k, u + 1)
        unit_stats(k, 6)
        for b in (SUM, SQ):
            k('v_permlane32_swap_b32 v%d, v%d\nv_permlane32_swap_b32 v%d, v%d' % (b, b + 2, b + 1, b + 3))
        for b in (SUM, SQ):
            k('v_add_f32 v%d, v%d, v%d\nv_add_f32 v%d, v%d, v%d' % (b, b, b + 2, b + 1, b + 1, b + 3))
        for b in (SUM, SQ):
            k('v_permlane16_swap_b32 v%d, v%d' % (b, b + 1))
        k('v_add_f32 v%d, v%d, v%d\nv_add_f32 v%d, v%d, v%d' % (SV, SUM, SUM + 1, SV + 1, SQ, SQ + 1))
        w = k('ds_write_b64 v%d, %s' % (STW, vr(SV, 2)))
        k('s_mov_b32 s35, %s\nv_mov_b32 v28, %s' % (f2h(1 / 448), f2h(1e-5)))
        wload(k, 2)
        k.wait(w)
        k('s_barrier')
        R = ACC + 12
        k('ds_read_b128 %s, v%d\nds_read_b128 %s, v%d offset:16' % (vr(R, 4), STR, vr(R + 4, 4), STR))
        wload(k, 2)
        P = ACC + 20
        k('''v_pk_add_f32 v[{r0}:{r1}], v[{r0}:{r1}], v[{r2}:{r3}]
        v_pk_add_f32 v[{r4}:{r5}], v[{r4}:{r5}], v[{r6}:{r7}]
        v_pk_add_f32 v[{r0}:{r1}], v[{r0}:{r1}], v[{r4}:{r5}]
        v_mul_f32 v{r0}, s35, v{r0}
        v_fma_f32 v{r1}, v{r1}, s35, v28
        v_fma_f32 v{r1}, -v{r0}, v{r0}, v{r1}
        v_rsq_f32 v{r2}, v{r1}
        v_mul_f32 v{r1}, {il}, v{r1}
        v_mul_f32 v{p0}, {nl}, v{r2}
        v_mul_f32 v{p1}, -v{r0}, v{p0}
        v_mul_f32 v{p2}, {nl}, v{r2}
        v_mul_f32 v{p3}, -v{r0}, v{p0}
        v_mul_f32 v{r1}, v{r1}, v{r2}
        v_permlane16_swap_b32 v{p0}, v{p2}
        v_permlane16_swap_b32 v{p1}, v{p3}
        ds_write_b64 v{fw}, v[{r0}:{r1}]
        v_mov_b32 v{p4}, v{p0}
        v_mov_b32 v{p5}, v{p1}
        v_mov_b32 v{p6}, v{p2}
        v_mov_b32 v{p7}, v{p3}
        v_permlane32_swap_b32 v{p0}, v{p4}
        v_permlane32_swap_b32 v{p1}, v{p5}
        v_permlane32_swap_b32 v{p2}, v{p6}
        v_permlane32_swap_b32 v{p3}, v{p7}'''.format(il=f2h(-1 / LOG2E), nl=f2h(-LOG2E), fw=FINW,
                                                    **{'r%d' % i: R + i for i in range(8)}, **{'p%d' % i: P + i for i in range(8)}))
        for u in range(7):
            for sl in range(4):
                b = BIG + 16 * u + 4 * sl
                for r in range(2):
                    k('v_pk_fma_f32 %s, %s, %s, %s op_sel:[0,0,1] op_sel_hi:[1,0,1]' % (vr(b + 2 * r, 2), vr(b + 2 * r, 2), vr(P + 2 * sl, 2), vr(P + 2 * sl, 2)))
            for sl in range(4):
                b = BIG + 16 * u + 4 * sl
                if sl < 2:
                    k('v_cvt_pk_bf16_f32 v%d, v%d, v%d\nv_cvt_pk_bf16_f32 v%d, v%d, v%d' % (b, b, b + 1, b + 1, b + 2, b + 3))
                    w = k('ds_write_b64 v%d, %s offset:%d' % (AD1, vr(b, 2), 512 * u + 14336 * sl))
                else:
                    k('v_cvt_pk_bf16_f32 v%d, v%d, v%d\nv_cvt_pk_bf16_f32 v%d, v%d, v%d' % (b + 1, b + 1, b, b, b + 3, b + 2))
                    w = k('ds_write_b64 v%d, %s offset:%d' % (AM, vr(b, 2), 512 * (6 - u) + 14336 * (sl - 2)))
            wload(k, 2)
        wload(k, RING)
        k('s_cmp_lg_u32 s3, 0\ns_cbranch_scc1 k_gemm')
        wl = WL()
        for n in range(RP, RING):
            wl(k, n).opt = True
        k('k_gemm:')
        k.wait(w)
    prologue(k)
    k('s_barrier')
    stamp(k, 9)

    def lowreg(n):
        return ar(4 * n, 4) if n < 16 else vr(208 + 4 * (n - 16), 4)

    def xn(a, ks):
        return lowreg(4 * ks + a) if ks < 7 else vr(BIG + 16 * (ks - 7) + 4 * a, 4)
    A2, HV, O0, X1, D0, E0, MU, RW = BIG + 48, 88, 94, 48, 244, 252, 254, 44
    NM = 392 + 224

    def build(est):
        use = {n: (4 * n, 4 * n + 3) for n in range(98)}
        order2 = []
        for st in range(14):
            o_ = [(a, t) for t in range(4) for a in range(4)] if st < 13 else [(a, t) for a in (1, 2, 3, 0) for t in range(4)]
            for j, (a, t) in enumerate(o_):
                g = 392 + 16 * st + j
                for key in (98 + 4 * st + t, ('h', 4 * st + a)):
                    use[key] = (use.get(key, (g, g))[0], g)
                order2.append((st, a, t))
        plan, pace, n = [], 3.0, RING
        while pace < 334:
            if pace <= 334 - OPT['pl'] < pace + OPT['p1'] / 10:
                plan.append(('poll', 0, pace))
            plan.append(('w', n, pace))
            n += 1
            pace += OPT['p1'] / 10
        chk = [336, OPT['cb'], OPT['cc'], OPT['cs'], 9999]
        hb = [0, 16, 32, 48, 56]
        for ph in range(4):
            pace = max(pace, chk[ph])
            plan.append(('chk', ph, pace))
            pace += 2
            todo = [('h', x) for x in range(hb[ph], hb[ph + 1])]
            polled = ph == 3
            while todo or (n < len(SEQ) and pace < chk[ph + 1]) or not polled:
                if not polled and pace >= chk[ph + 1] - OPT['pl'] - 2:
                    plan.append(('poll', ph + 1, max(pace, est.get(('flag', ph + 1), 0) + 2)))
                    polled = True
                elif todo and (n >= len(SEQ) or use[todo[0]][0] <= use[n][0]):
                    plan.append(todo.pop(0) + (pace,))
                elif n < len(SEQ):
                    plan.append(('w', n, pace))
                    n += 1
                pace += OPT['pc'] / 10
        pool = [(use[x][1], slot(x)) for x in range(RING)]
        pool += [(336 + x, lowreg(x)) for x in range(25)] + [(364 + x, vr(BIG + 4 * x, 4)) for x in range(12)]
        reg = {x: slot(x) for x in range(RING)}
        dead = []
        qx, ql, qe, qf, qg, qs, qa = Q(), Q(), Q(), Q(), Q(), Q(), Q()
        wl = WL()
        polls = {}
        for kind, x, e in plan:
            s = S()
            if kind in 'wh':
                key = x if kind == 'w' else ('h', x)
                pool.sort(key=lambda z: z[0])
                fr, r = pool.pop(0)
                reg[key] = r
                pool.append((use[key][1], r))
                e = max(e, fr)
                if kind == 'w':
                    ld = wl(s, x, r)
                else:
                    st = x // 4
                    w_ = wl.window(s, 41 if OPT['hw2'] else 43, (st & 1) * 28672 + (st >> 1) * 4096)
                    ld = s('buffer_load_dwordx4 %s, v%d, %s, s%d offen sc1' % (r, HV + x % 4, WS, w_))
                dead.append((ld, use[key][0] - 8))
            elif kind == 'poll':
                polls[x] = s('buffer_load_dword v%d, v%d, %s, s45 offen sc1' % (PD, PA, WS))
            elif OPT['nochk']:
                s('k_back%d:' % x)
            else:
                s('s_add_u32 s34, s62, %d' % (x + 1))
                s.wait(polls[x])
                s('v_cmp_gt_u32 vcc, s34, v%d' % PD)
                s('s_cbranch_vccnz k_slow%d' % x)
                s('k_back%d:' % x)
                e -= 2
            ql.add(s, e)
        mf = S()
        for p in range(3):
            for ks in range(14):
                for mat in range(2):
                    for a in range(4):
                        d = vr(ACC + 32 * (p & 1) + 16 * mat + 4 * a, 4)
                        mf('%s %s, %s, %s, %s' % (MF, d, reg[len(mf) // 4], xn(a, ks), d if ks else '0'))
        for ks in range(14):
            for a in range(4):
                d = vr(ACC + 32 + 4 * a, 4)
                mf('%s %s, %s, %s, %s' % (MF, d, reg[len(mf) // 4], xn(a, ks), d if ks else '0'))
        for st, a, t in order2:
            d = vr(A2 + 16 * a + 4 * t, 4)
            mf('%s %s, %s, %s, %s' % (MF, d, reg[98 + 4 * st + t], reg[('h', 4 * st + a)], d if st else '0'))
        assert len(mf) == NM
        pre = S()
        NPRE = 8
        for n in range(56):
            ks, a = n // 4, n % 4
            s = pre if n < NPRE else S()
            r = s('ds_read_b128 %s, v%d offset:%d' % (xn(a, ks), VO if a < 2 else VT, 14336 * (a & 1) + 1024 * ks))
            if n >= NPRE:
                qx.add(s, (n - NPRE) // 2 * 3)
                dead.append((r, 8 * ks + a - 6))
        un = [0]

        def unit(s, G, U, addr, off, sel=False):
            t = TMP + 4 * (un[0] & 1)
            un[0] += 1
            if sel:
                for j in range(4):
                    s('v_cndmask_b32 v%d, v%d, v%d, s[52:53]' % (t + j, G + j, U + j))
            for j in range(4):
                s('v_exp_f32 v%d, v%d' % (t + j, t + j if sel else G + j))
            for j in range(4):
                s('v_mul_f32 v%d, v%d, v%d' % (G + j, G + j, U + j))
            for j in range(4):
                s('v_fma_f32 v%d, v%d, s54, s54' % (t + j, t + j))
            for j in range(4):
                s('v_rcp_f32 v%d, v%d' % (t + j, t + j))
            for j in range(4):
                s('v_mul_f32 v%d, v%d, v%d' % (t + j, t + j, G + j))
            for j in range(2):
                s('v_cvt_pk_bf16_f32 v%d, v%d, v%d' % (t + j, t + 2 * j, t + 2 * j + 1))
            return s('ds_write_b64 v%d, %s offset:%d' % (addr, vr(t, 2), off))
        mark = {}

        def pub_read(s, ph, b):
            return [s('ds_read_b128 %s, v%d offset:%d' % (vr(b + 4 * z, 4), HR, 1024 * KS2[2 * ph + z])) for z in range(2 if ph < 3 else 1)]

        def pub_store(ph, b, rd):
            s = S()
            sts = []
            for z in range(len(rd)):
                s('s_add_u32 s35, s42, %d' % (4096 * (2 * ph + z)))
                if z == 0:
                    s.wait(*rd)
                sts.append(s('buffer_store_dwordx4 %s, v%d, %s, s35 offen sc1' % (vr(b + 4 * z, 4), L16, WS)))
            qf.add(s, est.get(('rd', ph), 0) + 5)
            mark[('rd', ph)] = rd[-1]
            mark[('st0', ph)] = sts[0]
            mark[('st', ph)] = sts[-1]
            s = S()
            s('v_add_u32 v%d, 1, v%d' % (FD, FD))
            if not OPT['nost']:
                s.wait(*sts)
            mark[('flag', ph)] = s('buffer_store_dword v%d, v%d, %s, s44 offen sc1' % (FD, FV, WS))
            qg.add(s, est.get(('st', ph), 0) + OPT['fl'])
        s = S()
        s('s_lshl_b32 s34, s2, %d\ns_add_u32 s34, s34, 0x%x\nv_mov_b32 v%d, 2\nv_lshl_or_b32 v%d, s20, 30, v%d' % (OPT['fs'], FLG, TMP, TMP + 1, FV))
        s('buffer_store_dword v%d, v%d, %s, s34 offen sc1' % (TMP, TMP + 1, WS))
        qs.add(s, 76)
        s = S()
        p2 = s('s_mov_b32 s34, 0x%x\nbuffer_load_dword v%d, v0, %s, s34 offen sc1' % (FLG, PD, WS))
        qs.add(s, 216)
        s = S()
        s.wait(p2)
        s('v_cmp_ne_u32 vcc, 2, v%d\ns_cbranch_vccnz k_p2\nk_p2b:' % PD)
        mark['p2'] = s[-2]
        qs.add(s, 296)
        s = S()
        sw = [s('ds_write_b128 v%d, %s offset:%d' % (SXW, vr(ACC + 32 + 8 + 4 * z, 4), 1024 * z)) for z in range(2)]
        qs.add(s, 394)
        mark['sw'] = sw[1]
        for p in range(3):
            s = S()
            hw = []
            for a in range(4):
                G = ACC + 32 * (p & 1) + 4 * a
                hw.append(unit(s, G, G + 16, HO if a < 2 else HT, 2048 * p + 7168 * (a & 1)))
            mark[('hw', p)] = hw[-1]
            qe.add(s, 112 * (p + 1) + 2)
            s = S()
            s.wait(*(hw + (sw if p == 2 else [])))
            mark[('bar', p)] = s('s_barrier')
            b = TMP if p < 2 else ACC
            pub_store(p, b, pub_read(s, p, b))
            if p < 2:
                dead.append((mark[('st', p)], 112 * (p + 2) - 1))
            qe.add(s, 397 if p == 2 else 0)
        s = S()
        for z in range(2):
            s('ds_read_b128 %s, v%d offset:%d' % (vr(ACC + 48 + 4 * z, 4), SXP, 1024 * z))
        hs = [unit(s, ACC + 32 + 4 * z, ACC + 48 + 4 * z, HS, 7168 * z, True) for z in range(2)]
        c1 = S()
        c1('v_lshl_add_u32 v%d, s20, 10, v%d' % (HV, L16))
        for a in range(1, 4):
            c1('v_xor_b32 v%d, %d, v%d' % (HV + a, 1024 * a, HV))
        mark['hv'] = c1[-1]
        mark['c1'] = c1[0]
        qa.add(c1, est.get(('hw', 1), 0) + 1)
        c2 = S()
        c2('''v_add_u32 v{d}, s56, v{L16}
        v_min_u32 v{e}, 1, v3
        v_add_u32 v{e1}, s58, v{d}
        v_mad_i32_i24 v{e}, v{e}, s69, v{e1}
        v_add_u32 v{e1}, s57, v{d}
        v_lshl_add_u32 v{mu}, s20, 4, v2
        v_lshlrev_b32 v{mu}, 3, v{mu}
        v_add_u32 v{mu}, {fin}, v{mu}
        ds_read_u16 v{e}, v{e}
        ds_read_u16 v{e1}, v{e1}
        ds_read_b64 v[{mu}:{sg}], v{mu}
        ds_read_b128 v[{d4}:{d7}], v{d} offset:1024
        ds_read_b128 v[{d}:{d3}], v{d}'''.format(d=D0, d3=D0 + 3, d4=D0 + 4, d7=D0 + 7, e=E0, e1=E0 + 1, mu=MU, sg=MU + 1, fin=L_FIN, L16=L16))
        mark['gath'] = c2[-1]
        qa.add(c2, 366)
        s.wait(*(hs + [c2[-1]]))
        mark[('bar', 3)] = s('s_barrier')
        pub_store(3, ACC + 8, pub_read(s, 3, ACC + 8))
        for P in range(2):
            for j in range(8):
                x, d = X1 + 8 * P + j, D0 + 4 * P + j // 2
                if j == 0:
                    s('v_lshlrev_b32 v%d, 16, v%d' % (x, E0 + P))
                else:
                    s('v_perm_b32 v%d, v%d, v%d, s%d' % (x, d, d - 1, 59 + (1 - j % 2)))
        for j in range(16):
            s('v_fma_f32 v%d, v%d, v%d, v%d' % (X1 + j, X1 + j, MU + 1, MU))
        s('''v_mul_u32_u24 v{o}, s61, v2
        v_mad_u32_u24 v{o}, v3, s63, v{o}
        v_add_u32 v{o}, s55, v{o}
        v_add_u32 v{o1}, 1, v3
        v_lshrrev_b32 v{o1}, 2, v{o1}
        v_lshl_add_u32 v{o1}, v{o1}, 31, v{o}
        v_lshl_add_u32 v{o1}, s63, 2, v{o1}
        v_add_u32 v{r3}, s39, v{L16}'''.format(o=O0, o1=O0 + 1, r3=RW + 3, L16=L16))
        for a in range(1, 4):
            s('v_lshrrev_b32 v%d, 10, v%d\nv_mul_u32_u24 v%d, 14336, v%d\nv_add_u32 v%d, v%d, v%d' % (RW + a - 1, HV + a, RW + a - 1, RW + a - 1, RW + a - 1, RW + a - 1, L16))
        qe.add(s, 0)
        rw = []
        for a in range(1, 4):
            s = S()
            for t in range(4):
                rw.append(s('ds_write_b128 v%d, %s offset:%d' % (RW + a - 1, vr(A2 + 16 * a + 4 * t, 4), 1024 * (4 * (a - 1) + t))))
            qe.add(s, NM - 16 + 4 * (a - 1) + 3, 1)
        log = {}
        o, left = sched(mf, [qx, qs, qf, qg, ql, qa, qe], log, lambda g: 4 if OPT['c0'] <= g < OPT['c1'] else 2)
        got = {key: log.get(id(v), 9999) for key, v in mark.items()}
        for x in polls:
            got[('poll', x)] = log[id(polls[x])]
        return pre, o, left, got, dead, log, rw
    est = {}
    for it in range(12):
        pre, o, left, got, dead, log, rw = build(est)
        if all(got[x] <= est.get(x, -1) for x in got):
            break
        est = {x: got[x] if it < 4 else max(got[x], est[x]) for x in got}
    else:
        assert 0
    if OPT['rep']:
        print(sorted(got.items(), key=lambda z: z[1]), 'left', len(left))
        print('at/lead', [(log.get(id(i), 9999), d + 8 - log.get(id(i), 9999)) for i, d in dead if i.cls == 'vld'])
    for ins, d in dead:
        assert log.get(id(ins), 9999) <= d, (ins.text, log.get(id(ins)), d)
    for ph in range(4):
        assert got[('bar', ph)] <= got[('rd', ph)] < got[('st0', ph)] - 2 and got[('st', ph)] < got[('flag', ph)] - 2
    assert got['sw'] < got[('bar', 2)] - 1 and got['gath'] < got[('bar', 3)] - 1 and got['hv'] < 336
    assert got[('hw', 1)] < got['c1'] and got['p2'] < got[('poll', 0)] and got['p2'] < got[('bar', 1)]
    if OPT['stamps'] in (1, 2):
        for g_, n_ in ((520, 12), (392, 10)) if OPT['stamps'] == 1 else list(zip(SG, (1, 2, 3, 4, 5, 6, 8, 10, 12)))[::-1]:
            i = [j for j, x in enumerate(o) if x.cls == 'mfma'][g_]
            s = S()
            stamp(s, n_, True)
            o[i + 1:i + 1] = s
    if OPT['nost'] >= 2:
        o = [x for x in o if not (x.cls == 'vld' and x.mn == 'buffer_load_dword') and not (x.cls == 'vst' and (OPT['nost'] == 2 or x.mn == 'buffer_store_dword'))]
        k('v_mov_b32 v%d, 4' % FD)
    k.extend(pre)
    k.extend(o)
    k.extend(left)
    stamp(k, 11)
    for ph in range(4):
        slow('k_slow%d:' % ph)
        spin(slow, 'k_sp%d' % ph, 'buffer_load_dword v%d, v%d, %s, s45 offen sc1' % (PD, PA, WS), 'v_cmp_gt_u32 vcc, s34, v%d' % PD)
        slow('s_branch k_back%d' % ph)
    for j in range(8):
        k('v_pk_add_f32 %s, %s, %s' % (vr(A2 + 2 * j, 2), vr(A2 + 2 * j, 2), vr(X1 + 2 * j, 2)))
    slow('k_p2:')
    spin(slow, 'k_p2s', 'buffer_load_dword v%d, v0, %s, s34 offen sc1' % (PD, WS), 'v_cmp_ne_u32 vcc, 2, v%d' % PD)
    slow('s_branch k_p2b')
    k.wait(*rw)
    k('s_barrier')
    for P in range(2):
        for a in range(3):
            for t in range(2 * P, 2 * P + 2):
                k('ds_read_b128 %s, v%d offset:%d' % (vr(BIG + 16 * a + 4 * t, 4), RW + 3, 1024 * (4 * a + t)))
    for P in range(2):
        for a in range(3):
            for j in range(4 * P, 4 * P + 4):
                k('v_pk_add_f32 %s, %s, %s' % (vr(A2 + 2 * j, 2), vr(A2 + 2 * j, 2), vr(BIG + 16 * a + 2 * j, 2)))
        b = A2 + 8 * P
        for j in range(4):
            k('v_cvt_pk_bf16_f32 v%d, v%d, v%d' % (b + j, b + 2 * j, b + 2 * j + 1))
    stamp(k, 13)
    k('s_cmp_lg_u32 s3, 0\ns_cbranch_scc1 k_fin')
    for u_ in range(2):
        xs = k('buffer_store_dwordx4 %s, v%d, %s, 0 offen sc1' % (vr(A2 + 8 * u_, 4), O0 + u_, WS))
    wl = WL()
    for n in range(RP, RP + R1):
        wl(k, n)
    stamp(k, 14)
    stamp_save(k, 0)
    b_trig(k)
    k("""s_mov_b32 s3, 1
    s_mov_b32 s62, 4
    s_mov_b32 s100, 2048
    s_mov_b32 s101, 0x4000
    s_mov_b32 s4, s8
    s_mov_b32 s5, s9
    s_mov_b32 s6, s10
    s_add_u32 s36, s36, 0x%x
    s_add_u32 s37, s37, 0x%x
    s_add_u32 s42, s42, 0x%x
    s_add_u32 s43, s43, 0x%x
    s_lshl_b32 s55, s24, 10
    s_add_u32 s55, s55, s27
    s_mul_i32 s55, s55, 896
    s_mul_i32 s35, s22, 112
    s_add_u32 s55, s55, s35
    s_mov_b32 s61, 57344
    s_mov_b32 s63, 16""" % (Z2 - Z1, Z2 - Z1, HG2 - HG1, HG2 - HG1))
    k.extend(kl2)
    k('k_fin:')
    k.reset()
    for u_ in range(2):
        k('buffer_store_dwordx4 %s, v%d, %s, 0 offen' % (vr(A2 + 8 * u_, 4), O0 + u_, SO))
    if OPT['stamps']:
        k('s_waitcnt vmcnt(0)')
        stamp(k, 14)
        stamp_save(k, 1)
        k('''s_lshl_b32 s35, s2, 2
        s_add_u32 s35, s35, s20
        s_lshl_b32 s35, s35, 8
        s_add_u32 s35, s35, 0x%x
        v_lshlrev_b32 v28, 2, v1
        buffer_store_dword v%d, v28, %s, s35 offen''' % (STP, STV, WS))
    k('k_end:\ns_endpgm')
    k.extend(slow)
    k.reset()
    k("""k_xre:
    s_cmp_eq_u32 s101, 0
    s_cbranch_scc1 k_xok
    s_sub_u32 s101, s101, 1
    s_waitcnt vmcnt(0) lgkmcnt(0)
    s_nop 7
    s_nop 7
    s_branch k_l2""")
    k("""k_rre:
    s_cmp_eq_u32 s101, 0
    s_cbranch_scc1 k_join
    s_sub_u32 s101, s101, 1
    s_mov_b32 s1, s29
    k_res:""")
    for n in range(14):
        k('s_add_u32 m0, s39, %d' % (1024 * n))
        if n and n & 1 == 0:
            k('s_add_u32 s1, s1, s100')
        k('buffer_load_dwordx4 v%d, %s, s1 offen sc1 lds' % (60 + (n & 1), SX_))
    k('s_waitcnt vmcnt(0)\ns_branch k_a2t')
    k.extend(kidle)
    k('k_last:')
    k('s_endpgm')
    return k


HDR = open('cdna_kernels/%s.s.ref' % NAME).read().split('; Override launch geometry')[0]


def main():
    out = [HDR.rstrip()]
    if OPT['stamps'] == 2:
        out.append('; SG ' + ' '.join(map(str, SG)))
    if OPT['stamps'] == 3:
        out.append('; S3')
    out.append('; @launch grid=(256,1,1) block=(256,1,1) lds=%d' % LDS)
    out.append('.amdgcn_target "amdgcn-amd-amdhsa--gfx950"\n.text')
    out += finalize(gen())
    out.append('''.section .rodata,"a"
.p2align 6
.amdhsa_kernel %s_kernel
  .amdhsa_next_free_vgpr 512
  .amdhsa_next_free_sgpr 102
  .amdhsa_accum_offset 256
  .amdhsa_group_segment_fixed_size 0
  .amdhsa_kernarg_size 96
  .amdhsa_user_sgpr_count 2
  .amdhsa_user_sgpr_kernarg_segment_ptr 1
  .amdhsa_system_sgpr_workgroup_id_x 1
.end_amdhsa_kernel
''' % NAME)
    open(sys.argv[1], 'w').write('\n'.join(out) + '\n')


main()
```

```python
import sys, os, struct, re
sys.path.insert(0, os.path.dirname(os.path.abspath(__file__)))
from asmlib import *

NAME = 'interleave_layers__spectral_fnet__swiglu_ffn__prompt'
W1P, W2P, Z1, Z2, X2, FLG, STP, PART = 0, 0x310000, 0x500000, 0x700000, 0x8C0000, 0xB00000, 0xB10000, 0xC00000
WSN = 0x1A00000
XBYTES = 1835008
OOB = 0x80000000
OPT = dict(stamps=0, clk=0, r1=8, rp=32, pre1=10, ev=4, ord=0, f0=2, late=1, ws0=60, cpf=0, nf=0, nz=0, na=11, pa=0, ng0=6, ngs=12, pm=0, g2f=4, g2p=200, g2c=320, pw0=110, pev=5, cg=4, ck=8, qp=1, ca=336, amaj=1, sb=397, pu=2, kd=46, ks=5, kw=6, np0=8, zexp=0, rep=0, fs=6, fl=35, cb=385, cc=450, cs=505, pl=25, c0=336, c1=0, pc=28, p1=40, nochk=0, hw2=0, nost=0, nop2=0)
SG = [112, 224, 260, 336, 392, 456, 490, 520, 584]
for a in sys.argv[2:]:
    k_, v_ = a.split('=')
    if k_ == 'sg':
        SG = [int(x) for x in v_.split(',')]
    else:
        OPT[k_] = int(v_)
MF = 'v_mfma_f32_16x16x32_bf16'
L_WT, L_H, L_ST, L_FIN, L_SX, LDS = 57344, 114688, 143360, 145408, 147456, 155648
RING = 48
LOG2E = 1.4426950408889634
SX_, WS, SO, SW, SD = 's[4:7]', 's[8:11]', 's[12:15]', 's[16:19]', 's[64:67]'
L16, ZR, AD1, AM, VO, VT, HO, HT, HS, PZ, STW, STR, FINW, SXW, SXP, PD, PA = range(4, 21)
WR, ZO, BP = 248, 249, 250
BTR = 64
STV = 23
TMP, ACC, BIG, TRG = 24, 32, 96, 208
SPIN = 0x20000
HG1 = PART
NPZ = 11
FV, CK = 22, 21


def f2h(x):
    return '0x%08x' % struct.unpack('<I', struct.pack('<f', x))[0]


def stamp(k, i, force=False):
    if i == 15:
        return
    if OPT['stamps'] == 2 and i in (1, 2, 3, 4, 5, 6, 8, 10, 12) and not force:
        return
    if OPT['stamps'] == 3 and i in (8, 9, 10, 11, 12, 13) and not force:
        return
    if OPT['stamps'] != 3 and force == 3:
        return
    if OPT['stamps']:
        k('%s s[%d:%d]' % ('s_memtime' if OPT['clk'] else 's_memrealtime', 70 + 2 * i, 71 + 2 * i))


def stamp_save(k, lay):
    if OPT['stamps']:
        k('s_waitcnt lgkmcnt(0)')
        for i in range(15):
            k('v_writelane_b32 v%d, s%d, %d' % (STV, 70 + 2 * i, 16 * lay + i))
        k('v_writelane_b32 v%d, s45, %d' % (STV, 32 + lay))


def srd(k, d, lo, n):
    if lo != d:
        k('s_mov_b32 s%d, s%d\ns_mov_b32 s%d, s%d' % (d, lo, d + 1, lo + 1))
    k('s_mov_b32 s%d, 0x%x\ns_mov_b32 s%d, 0x00020000' % (d + 2, n, d + 3))


def spin(k, name, load, cmp):
    k('s_mov_b32 s68, 0')
    k('%s:' % name)
    k(load)
    k('s_add_u32 s68, s68, 1\ns_waitcnt vmcnt(0)')
    k(cmp)
    k('''s_cmp_ge_u32 s68, 0x%x
    s_cbranch_scc1 %s_go
    s_nop 2
    s_cbranch_vccnz %s''' % (SPIN, name, name))
    k('%s_go:' % name)


SEQ = [(40, p * 4 * 28672 + 1024 * x) for p in range(3) for x in range(28)]
SORD = [7, 8, 9, 4, 5, 6, 10, 11, 12, 13, 0, 1, 2, 3]
SEQ += [(38, 2048 * ks) for ks in SORD]
SEQ += [(41, 1024 * x) for x in range(56)]
KS2 = [1, 2, 3, 4, 5, 6, 0]


def slot(n):
    return ar(64 + 4 * n, 4)


class WL:
    def __init__(self):
        self.win = {}
        self.cnt = 0

    def window(self, s, b, off):
        key = (b, off >> 12)
        if self.win.get(key) is None:
            reg = 46 + self.cnt % 4
            self.cnt += 1
            for x in self.win:
                if self.win[x] == reg:
                    self.win[x] = None
            self.win[key] = reg
            s('s_add_u32 s%d, s%d, %d' % (reg, b, off & ~4095))
        return self.win[key]

    def __call__(self, s, n, dst=None):
        b, off = SEQ[n]
        reg = self.window(s, b, off)
        return s('buffer_load_dwordx4 %s, v%d, %s, s%d offen offset:%d sc1' % (dst or slot(n), L16, WS, reg, off & 4095))


def raw_dma(k, soff):
    out = []
    for kp in range(7):
        for o in range(2):
            k('s_add_u32 m0, s39, %d' % (kp * 2048 + o * 1024 - 128 * kp))
            d = k('buffer_load_dwordx4 v%d, %s, s%d offen offset:%d lds' % (60 + o, SX_, soff, 128 * kp))
        out.append(d)
    return out


def raw_read(k, kp):
    for kap in range(2):
        r = k('ds_read_b128 %s, v%d offset:%d' % (ar(4 * (2 * kp + kap), 4), 26 + kap, 2048 * kp))
    return r


def raw_addr(k):
    k('''v_lshrrev_b32 v26, 1, v2
    v_xor_b32 v26, v3, v26
    v_lshlrev_b32 v26, 4, v26
    v_lshl_add_u32 v26, v2, 7, v26
    v_add_u32 v26, s39, v26
    v_xor_b32 v27, 64, v26''')


def a_trig(k):
    T = 232
    k('''v_lshl_add_u32 v{t}, s20, 4, v2
    v_cvt_f32_u32 v{t}, v{t}
    v_lshl_add_u32 v{t1}, v3, 8, s34
    v_xor_b32 v{t2}, 32, v{t1}
    v_cvt_f32_u32 v{t1}, v{t1}
    v_cvt_f32_u32 v{t2}, v{t2}
    v_mul_f32 v{t}, 0x3a000000, v{t}
    v_and_b32 v{t3}, 1, v2
    v_mul_u32_u24 v{t3}, 0x8000, v{t3}
    v_lshl_or_b32 v{t3}, v{t3}, 16, v{t3}'''.format(t=T, t1=T + 1, t2=T + 2, t3=T + 3))
    for bo in range(2):
        b = TRG + 12 * bo
        k('v_mul_f32 v%d, v%d, v%d' % (T + 4, T, T + 1 + bo))
        for r in range(1, 4):
            k('v_fmamk_f32 v%d, v%d, %s, v%d' % (T + 4 + r, T, f2h(64.0 * r), T + 4))
        for r in range(4):
            k('v_fract_f32 v%d, v%d' % (T + 4 + r, T + 4 + r))
        for r in range(4):
            k('v_sin_f32 v%d, v%d' % (T + 8 + r, T + 4 + r))
            k('v_cos_f32 v%d, v%d' % (T + 4 + r, T + 4 + r))
        for p in range(2):
            k('v_cvt_pk_bf16_f32 v%d, v%d, v%d' % (b + 4 + p, T + 8 + 2 * p, T + 9 + 2 * p))
            k('v_cvt_pk_bf16_f32 v%d, v%d, v%d' % (b + 2 + p, T + 4 + 2 * p, T + 5 + 2 * p))
        for p in range(2):
            k('v_xor_b32 v%d, 0x80008000, v%d' % (b + p, b + 4 + p))
        for p in range(6):
            k('v_xor_b32 v%d, v%d, v%d' % (b + 6 + p, T + 3, b + p))


def btrg(kind, h, ks):
    return BTR + ((kind * 2 + h) * 2 + ks) * 4


def b_trig(k):
    T = ACC
    k('''v_cvt_f32_u32 v%d, v2
    v_add_u32 v%d, s30, v2
    v_and_b32 v%d, 1, v3
    v_and_b32 v%d, 1, v2
    v_and_b32 v%d, 1, v%d
    v_cvt_f32_u32 v%d, v%d
    v_cvt_f32_u32 v%d, v3
    s_mov_b32 s35, 0x80008000
    v_mul_lo_u32 v%d, v%d, s35
    v_mul_lo_u32 v%d, v%d, s35
    v_mul_lo_u32 v%d, v%d, s35
    v_mul_f32 v%d, 0x3d000000, v%d
    v_mul_f32 v%d, 0xbd000000, v%d
    v_add_f32 v%d, 4.0, v%d
    v_add_f32 v%d, 4.0, v%d
    v_add_f32 v%d, 4.0, v%d''' % (T, T + 1, T + 2, T + 3, T + 4, T + 1, T + 1, T + 1, T + 8,
                                 T + 2, T + 2, T + 3, T + 3, T + 4, T + 4, T, T, T + 1, T + 1,
                                 T + 9, T + 8, T + 10, T + 9, T + 11, T + 10))
    for kind in range(2):
        for i in range(4):
            k('v_mul_f32 v%d, v%d, v%d' % (T + 12 + i, T + kind, T + 8 + i))
        for i in range(4):
            k('v_fract_f32 v%d, v%d' % (T + 12 + i, T + 12 + i))
        for i in range(4):
            k('v_sin_f32 v%d, v%d' % (T + 16 + i, T + 12 + i))
            k('v_cos_f32 v%d, v%d' % (T + 12 + i, T + 12 + i))
        for i in range(4):
            k('v_cvt_pk_bf16_f32 v%d, v%d, v%d' % (btrg(kind, 0, 0) + i, T + 12 + i, T + 16 + i))
        for i in range(4):
            k('v_xor_b32 v%d, v%d, v%d' % (btrg(kind, 0, 1) + i, T + 3 + kind, btrg(kind, 0, 0) + i))
        for i in range(8):
            k('v_xor_b32 v%d, v%d, v%d' % (btrg(kind, 1, 0) + i, T + 2, btrg(kind, 0, 0) + i))


def consts_a(k):
    k('''s_bfe_u32 s21, s2, 0x20001
    s_lshl_b32 s21, s21, 3
    s_bfe_u32 s35, s2, 0x30003
    s_add_u32 s21, s21, s35
    s_sub_u32 s26, 64, s21
    s_xor_b32 s28, s23, 1
    s_cmp_eq_u32 s21, 0
    s_cselect_b32 s26, 32, s26
    s_cselect_b32 s28, s23, s28
    s_cmp_eq_u32 s23, 0
    s_cselect_b32 s27, s21, s26
    s_mul_i32 s37, s20, %d
    s_lshl_b32 s35, s33, 12
    s_add_u32 s37, s37, s35
    s_lshl_b32 s35, s32, 6
    s_add_u32 s37, s37, s35
    s_add_u32 s37, s37, 0x%x
    s_lshl_b32 s1, s24, 10
    s_add_u32 s1, s1, s27
    s_mul_i32 s1, s1, 896
    s_mov_b32 s100, 128
    s_mov_b32 s101, 0
    s_mov_b32 s3, 0
    s_lshl_b32 s35, s20, 11
    s_add_u32 s35, s35, %d
    v_add_u32 v%d, s35, v%d
    v_xor_b32 v%d, 2048, v%d''' % (16 * 28672, Z1, L_SX, SXW, L16, SXP, SXW))


def consts_b(k):
    k('''s_and_b32 s22, s2, 1
    s_lshl_b32 s22, s22, 2
    s_lshr_b32 s35, s2, 6
    s_add_u32 s22, s22, s35
    s_cmp_eq_u32 s28, 0
    s_cselect_b32 s30, s21, s26
    s_min_u32 s30, s30, 1
    s_mul_i32 s31, s24, 7
    s_mul_i32 s36, s27, 14
    s_add_u32 s36, s36, s31
    s_lshl_b32 s36, s36, 11
    s_add_u32 s36, s36, 0x%x
    s_mul_i32 s35, s22, 14
    s_add_u32 s38, s35, s23
    s_mul_i32 s38, s38, 28672
    s_lshl_b32 s34, s24, 10
    s_add_u32 s38, s38, s34
    s_add_u32 s40, s35, s20
    s_add_u32 s40, s40, 2
    s_mul_i32 s40, s40, 28672
    s_lshl_b32 s41, s22, 2
    s_add_u32 s41, s41, s20
    s_mul_i32 s41, s41, 57344
    s_add_u32 s41, s41, 0x%x
    s_mul_i32 s42, s2, 28672
    s_add_u32 s42, s42, 0x%x
    s_and_b32 s43, s2, 0x3e
    s_lshl_b32 s35, s24, 7
    s_add_u32 s43, s43, s35
    s_add_u32 s43, s43, s23
    s_mul_i32 s43, s43, 28672
    s_add_u32 s43, s43, 0x%x
    s_mov_b32 s50, 0
    s_mul_i32 s51, s24, 0xffff0000
    s_sub_u32 s52, 0, s24
    s_mov_b32 s53, s52''' % (Z1, W2P, HG1, HG1))
    k('''v_lshlrev_b32 v{ZR}, 2, v1
    v_add_u32 v{ZR}, s39, v{ZR}
    v_lshrrev_b32 v28, 1, v3
    v_and_b32 v29, 1, v3
    v_lshlrev_b32 v30, 4, v2
    v_lshl_add_u32 v30, v28, 8, v30
    v_lshl_add_u32 v30, v29, 3, v30
    s_mul_i32 s35, s23, 28672
    s_lshl_b32 s34, s31, 9
    s_add_u32 s35, s35, s34
    v_add_u32 v{AD1}, s35, v30
    v_xor_b32 v30, 0x108, v30
    s_mul_i32 s35, s28, 28672
    s_add_u32 s35, s35, {c42}
    s_sub_u32 s35, s35, s34
    v_add_u32 v{AM}, s35, v30
    s_mul_i32 s35, s24, 28672
    v_add_u32 v{VO}, s35, v{L16}
    s_sub_u32 s35, 28672, s35
    v_add_u32 v{VT}, s35, v{L16}
    v_lshl_add_u32 v{HT}, v28, 9, v{L16}
    s_lshl_b32 s34, s24, 11
    s_lshl_b32 s35, s23, 9
    s_add_u32 s35, s35, s34
    s_add_u32 s35, s35, 24576
    v_add_u32 v{HS}, s35, v{HT}
    s_mul_i32 s34, s24, 2560
    s_lshl_b32 s35, s23, 12
    s_add_u32 s35, s35, s34
    v_add_u32 v{HO}, s35, v{HT}
    v_xor_b32 v{HT}, 2048, v{HO}
    v_mov_b32 v30, s23
    v_mov_b32 v31, s28
    v_cmp_eq_u32 vcc, 0, v28
    v_cndmask_b32 v30, v31, v30, vcc
    v_lshl_add_u32 v30, v30, 1, v29
    v_lshl_add_u32 v30, v30, 4, v2
    v_lshlrev_b32 v{STR}, 5, v30
    v_add_u32 v{STR}, {LST}, v{STR}
    v_lshl_add_u32 v{STW}, v28, 4, v{STR}
    s_lshl_b32 s35, s24, 3
    v_add_u32 v{STW}, s35, v{STW}
    v_lshlrev_b32 v{FINW}, 3, v30
    v_add_u32 v{FINW}, {LFIN}, v{FINW}
    v_lshlrev_b32 v0, 6, v0'''.format(ZR=ZR, AD1=AD1, AM=AM, VO=VO, VT=VT, HS=HS, HO=HO, HT=HT, STR=STR, STW=STW, FINW=FINW,
                                 L16=L16, c42=42 * 256, LH=L_H, LST=L_ST, LFIN=L_FIN))
    k('''s_mul_i32 s56, s22, 1792
    s_lshl_b32 s29, s27, 1
    s_add_u32 s29, s29, s24
    s_mul_i32 s29, s29, 14336
    s_add_u32 s29, s29, 0x%x
    s_add_u32 s55, s29, s56
    s_mov_b32 s61, 16
    s_mov_b32 s63, 256
    s_add_u32 s56, s56, s39
    s_mov_b32 s59, 0x05040c0c
    s_cmp_lt_u32 s22, 4
    s_cselect_b32 s57, -242, 0
    s_cselect_b32 s60, 0x03020c0c, s59
    s_cselect_b32 s59, s59, 0x07060c0c
    s_cmp_eq_u32 s22, 4
    s_cselect_b32 s58, -242, s57
    s_cmp_eq_u32 s22, 0
    s_cselect_b32 s58, 7168, s58
    s_sub_u32 s69, s57, s58
    s_add_u32 s57, s57, 1024
    s_mov_b32 s54, %s''' % (X2, f2h(LOG2E * LOG2E)))
    if OPT['stamps']:
        k('v_mov_b32 v%d, 0' % STV)


def w2_decode(k, r, src, dst):
    k("""s_lshr_b32 s25, s{r}, 3
    s_and_b32 s{r}, s{r}, 7
    s_mul_i32 s{src}, s25, 28672
    s_mul_i32 s35, s{r}, 112
    s_add_u32 s{src}, s{src}, s35
    s_mul_i32 s35, s25, 9363
    s_lshr_b32 s35, s35, 16
    s_mul_i32 s34, s35, 7
    s_sub_u32 s34, s25, s34
    s_cmp_eq_u32 s34, 0
    s_cselect_b32 s34, 7, s34
    s_sub_u32 s34, s34, 1
    s_lshl_b32 s34, s34, 1
    s_and_b32 s25, s35, 1
    s_add_u32 s34, s34, s25
    s_lshr_b32 s35, s35, 1
    s_lshl_b32 s{r}, s{r}, 2
    s_add_u32 s35, s35, s{r}
    s_mul_i32 s35, s35, 14
    s_add_u32 s35, s35, s34
    s_lshl_b32 s35, s35, 12
    s_add_u32 s{dst}, s35, 0x{w2p:x}""".format(r=r, src=src, dst=dst, w2p=W2P))


def tr_addr(k, d, base, hi, odd):
    k("""v_bfe_u32 v{d}, v1, 2, 2
    v_lshl_add_u32 v{d}, v3, 3, v{d}
    v_lshlrev_b32 v{d}, 3, v{d}
    v_and_b32 v{e}, 1, v1
    v_add_u32 v{d}, v{d}, v{e}
    v_lshl_add_u32 v{d}, v{d}, 4, s{b}
    v_bfe_u32 v{e}, v1, 1, 1
    v_mad_u32_u24 v{d}, v{e}, {hi}, v{d}
    v_add_u32 v{e}, {odd}, v{d}""".format(d=d, e=d + 1, b=base, hi=hi, odd=odd))


def tr_read(k, d, adr, off):
    for t in range(4):
        for hh in range(2):
            k('ds_read_b64_tr_b16 %s, v%d offset:%d' % (vr(d + 4 * t + 2 * hh, 2), adr + (t & 1), off + 512 * hh + 64 * (t >> 1)))


def poison(k, lo, hi, d, t):
    lst = [(HG1, 7168, 1024 * x) for x in range(7)] + [(Z2, 3584, x) for x in (0, 1024, 2048, 2560)]
    cur = None
    if lo < hi:
        for x in range(4):
            k('v_mov_b32 v%d, -1' % (d + x))
    for b, st, off in lst[lo:hi]:
        if cur is None or cur[0] != st:
            k('s_lshl_b32 s{t}, s2, 2\ns_add_u32 s{t}, s{t}, s20\ns_mul_i32 s{t}, s{t}, {st}'.format(t=t, st=st))
            cur = (st, 0)
        w = b + (off & ~4095)
        if w != cur[1]:
            k('s_add_u32 s%d, s%d, 0x%x' % (t, t, w - cur[1]))
            cur = (st, w)
        k('buffer_store_dwordx4 %s, v%d, %s, s%d offen offset:%d %s' % (vr(d, 4), L16, WS, t, off & 4095, ('sc1', 'sc0 sc1', 'sc1 nt', 'sc0 sc1 nt')[OPT['pm']]))


def gen():
    k = S()
    k('.p2align 8\n.globl %s_kernel\n.type %s_kernel,@function\n%s_kernel:' % (NAME, NAME, NAME))
    stamp(k, 0)
    k("""s_load_dwordx2 s[4:5], s[0:1], 0
    s_load_dwordx8 s[56:63], s[0:1], 48
    s_load_dwordx4 s[64:67], s[0:1], 80
    s_cmp_ge_u32 s2, 256
    s_cbranch_scc1 k_end
    v_lshrrev_b32 v2, 6, v0
    v_and_b32 v1, 63, v0
    v_readfirstlane_b32 s20, v2
    v_lshrrev_b32 v3, 4, v1
    v_lshrrev_b32 v62, 3, v1
    v_and_b32 v63, 7, v1
    v_xor_b32 v60, v63, v3
    v_lshlrev_b32 v60, 4, v60
    s_mov_b32 s35, 57344
    v_mad_u32_u24 v60, v62, s35, v60
    v_xor_b32 v61, 64, v60
    v_add_u32 v61, 0x70000, v61
    s_and_b32 s32, s2, 7
    s_lshl_b32 s32, s32, 2
    s_bfe_u32 s35, s2, 0x20003
    s_add_u32 s32, s32, s35
    s_lshr_b32 s33, s2, 5
    s_lshr_b32 s23, s20, 1
    s_and_b32 s24, s20, 1
    s_mul_i32 s39, s20, 14336
    s_mov_b32 s6, 0x%x
    s_mov_b32 s7, 0x00020000
    s_cmp_ge_u32 s2, 224
    s_cbranch_scc1 k_idle1""" % XBYTES)
    rest = """v_lshlrev_b32 v63, 4, v63
    v_and_b32 v2, 15, v1
    v_lshlrev_b32 v%d, 4, v1
    s_mov_b32 s19, 0x00020000""" % L16
    PW = 64
    k("""s_lshl_b32 s43, s23, 5
    s_lshl_b32 s35, s24, 10
    s_add_u32 s43, s43, s35
    s_add_u32 s43, s43, s32
    s_mul_i32 s43, s43, 896
    s_mov_b32 s40, s33""")
    k0, k = k, S()
    k(rest)
    k("""s_lshl_b32 s45, s2, 2
    s_add_u32 s45, s45, s20
    s_mul_i32 s44, s20, 7168
    s_add_u32 s44, s44, %d
    s_mov_b32 s18, %d
    s_cmp_ge_u32 s2, 196
    s_cbranch_scc1 k_u2
    s_lshr_b32 s22, s45, 1
    s_mul_i32 s25, s22, 2341
    s_lshr_b32 s25, s25, 16
    s_mul_i32 s35, s25, 28
    s_sub_u32 s22, s22, s35
    s_lshl_b32 s46, s25, 5
    s_cmp_lt_u32 s25, 7
    s_addc_u32 s46, s46, 0
    s_mul_i32 s46, s46, 3584
    s_lshl_b32 s35, s22, 7
    s_add_u32 s46, s46, s35
    s_mul_i32 s47, s22, 56
    s_add_u32 s47, s47, s25
    s_lshl_b32 s47, s47, 1
    s_add_u32 s47, s47, s24
    s_lshl_b32 s47, s47, 10
    s_mov_b32 s48, 28672
    s_mov_b32 s49, 3584
    s_cmp_eq_u32 s25, 7
    s_cselect_b32 s21, %d, 0
    s_mov_b32 s52, 8
    s_mov_b32 s53, 32
    s_branch k_u3
    k_u2:
    s_sub_u32 s22, s45, 784""" % (L_H, 448 * 3584, 224 * 3584))
    w2_decode(k, 22, 46, 47)
    k("""s_mov_b32 s48, 1024
    s_mov_b32 s49, 896
    s_mov_b32 s21, 0
    s_mov_b32 s52, 32
    s_mov_b32 s53, 8
    k_u3:
    v_mad_u32_u24 v63, v62, s49, v63
    v_add_u32 v63, s46, v63
    v_cmp_eq_u32 vcc, 0, v62
    v_mov_b32 v62, s21
    v_cndmask_b32 v62, 0, v62, vcc
    v_sub_u32 v62, v63, v62
    s_lshl_b32 s49, s49, 3""")
    srd(k, 8, 66, WSN)
    srd(k, 12, 62, XBYTES)
    srd(k, 64, 64, 256)
    dec, k = k, k0
    fw, fx, fp = S(), S(), S()
    fw("""s_cmp_eq_u32 s24, 0
    s_cselect_b32 s16, s56, s58
    s_cselect_b32 s17, s57, s59
    s_cmp_ge_u32 s2, 196
    s_cselect_b32 s16, s60, s16
    s_cselect_b32 s17, s61, s17""")
    for n in range(4):
        fw('s_add_u32 m0, s44, %d' % (1024 * n))
        if n > 1:
            fw('s_mul_i32 s46, s49, %d' % n)
        wd = fw('buffer_load_dwordx4 v%d, %s, %s offen lds' % (63 if n else 62, SW, ('0', 's49', 's46', 's46')[n]))
    stamp(fw, 12, 3)
    for kp in range(7):
        if kp:
            fx("""s_add_u32 s40, s40, 1
            s_cmp_eq_u32 s40, 7
            s_cselect_b32 s40, 0, s40""")
        fx("""s_lshl_b32 s42, s40, 11
        s_add_u32 m0, s42, s39
        s_lshl_b32 s41, s40, 7
        s_add_u32 s41, s41, s43""")
        fx('buffer_load_dwordx4 v60, %s, s41 offen lds' % SX_)
        fx('s_add_u32 m0, m0, 1024')
        xl = fx('buffer_load_dwordx4 v61, %s, s41 offen lds' % SX_)
    stamp(fx, 13, 3)
    if OPT['ord']:
        fx.extend(fw)
    m = S()
    T = BIG
    m("""s_lshl_b32 s35, s33, 5
    s_lshl_b32 s34, s24, 4
    s_add_u32 s35, s35, s34
    s_add_u32 s35, s35, 1
    v_add_u32 v28, s35, v2
    v_and_b32 v31, 1, v28
    v_cvt_f32_u32 v28, v28
    v_mul_u32_u24 v31, 0x8000, v31
    v_mul_f32 v28, %s, v28
    v_lshl_or_b32 v31, v31, 16, v31
    s_lshl_b32 s35, s23, 7
    v_lshl_add_u32 v29, v3, 3, s35
    v_cvt_f32_u32 v29, v29
    v_mul_f32 v29, v28, v29
    s_mul_i32 s35, s24, 28672
    s_lshl_b32 s34, s23, 12
    s_add_u32 s35, s35, s34
    s_add_u32 s35, s35, %d
    v_add_u32 v30, s35, v%d""" % (f2h(-1 / 448), L_WT, L16))
    for kk in range(4):
        B = T + 32 * (kk & 1)
        n = 8 if kk < 3 else 4
        if kk == 3:
            m('s_mul_i32 s35, s23, %s\ns_mul_i32 s34, s23, 4088\nv_fma_f32 v29, v28, s35, v29\nv_subrev_u32 v30, s34, v30' % f2h(-124.0))
        for el in range(n):
            m('v_fmamk_f32 v%d, v28, %s, v29' % (B + el, f2h(32.0 * kk + el)))
        for el in range(n):
            m('v_sin_f32 v%d, v%d' % (B + n + el, B + el))
            m('v_cos_f32 v%d, v%d' % (B + el, B + el))
        for x in range(n):
            m('v_cvt_pk_bf16_f32 v%d, v%d, v%d' % (B + 16 + x, B + 2 * x, B + 2 * x + 1))
        for x in range(n):
            m('v_xor_b32 v%d, v31, v%d' % (B + 24 + x, B + 16 + x))
        for fl in range(2):
            for p in range(2):
                m('ds_write_b%d v30, %s offset:%d' % (16 * n, vr(B + 16 + 8 * fl + n // 2 * p, n // 2), 14336 * p + 1024 * kk + 7168 * fl))
    tr_addr(m, 88, 44, 's52', 's53')
    raw_addr(m)
    i0 = [i for i, x in enumerate(fx) if x.cls == 'dma'][OPT['f0'] - 1] + 1
    k.extend(fx[:4])
    k('s_waitcnt lgkmcnt(0)')
    stamp(k, 8, 3)
    k.extend(fx[4:i0])
    stamp(k, 10, 3)
    k.extend(dec)
    pz = S()
    poison(pz, 0, OPT['nf'], 52, 50)
    m = weave(m, S(fx[i0:]), only=('valu',), every=OPT['ev'], start=OPT['ws0'])
    k.extend(pz[:4])
    m = weave(m, S(pz[4:]), only=('valu',), every=OPT['pev'], start=OPT['pw0'])
    if OPT['rep']:
        print('front valu', sum(x.cls == 'valu' for x in m), [(x.cls, sum(y.cls == 'valu' for y in m[:j])) for j, x in enumerate(m) if x.cls in VM])
    k.extend(m)
    stamp(k, 1)

    def w_out(k):
        for t in range(4):
            k('buffer_store_dwordx4 %s, v%d, %s, s47 offen sc1' % (vr(PW + 4 * t, 4), L16, WS)).opt = True
            if t < 3:
                k('s_add_u32 s47, s47, s48')
    consts_a(k)
    stamp(k, 9, 3)
    k.wait(xl)
    stamp(k, 11, 3)
    for kp in range(7):
        raw_read(k, kp)
    if not OPT['ord']:
        k.extend(fw)
    k.extend(fp)
    stamp(k, 2, 3)
    k('s_waitcnt lgkmcnt(0)\ns_barrier')
    k0, k = k, S()

    k('k_idle1:')
    k.reset()
    k(rest)
    if OPT['cpf']:
        k("""s_getpc_b64 s[26:27]
        k_pc:
        s_bfe_u32 s21, s2, 0x20003
        s_lshl_b32 s21, s21, 2
        s_add_u32 s21, s21, s20
        s_lshl_b32 s21, s21, 12
        v_lshl_add_u32 v40, v1, 6, s21
        v_min_u32 v40, k_last - %s_kernel, v40
        s_sub_u32 s26, s26, k_pc - %s_kernel
        s_subb_u32 s27, s27, 0
        global_load_dword v50, v40, s[26:27]""" % (NAME, NAME))
    k("""s_sub_u32 s21, s2, 224
    s_lshl_b32 s21, s21, 2
    s_add_u32 s21, s21, s20
    s_cmp_eq_u32 s21, 127
    s_cselect_b32 s22, 0, 0x%x
    v_mov_b32 v28, s22
    v_mov_b32 v36, 1
    v_mov_b32 v80, -1
    v_lshlrev_b32 v37, %d, v1
    v_add_u32 v37, s22, v37
    s_mov_b32 s49, 896
    v_mad_u32_u24 v63, v62, s49, v63
    s_add_u32 s55, s39, %d
    s_mov_b32 s18, %d""" % (OOB, OPT['fs'], L_WT, 1792 * 896))
    for n in range(3):
        k('s_add_u32 s22, s21, %d' % (112 + 128 * n))
        w2_decode(k, 22, 26 + n, 46 + n)
    k("""s_cmp_ge_u32 s21, 80
    s_cselect_b32 s28, 0x%x, s28
    s_cselect_b32 s48, 0x%x, s48
    s_waitcnt lgkmcnt(0)
    s_mov_b32 s16, s60
    s_mov_b32 s17, s61""" % (OOB, OOB))
    stamp(k, 8, 3)
    srd(k, 8, 66, WSN)
    srd(k, 12, 62, XBYTES)
    srd(k, 64, 64, 256)
    for x in range(4):
        zs = k('s_mov_b32 s35, 0x%x\nbuffer_store_dword v80, v37, %s, s35 offen sc1' % (FLG + (64 * x << OPT['fs']), WS))
    wd = []
    for n in range(3):
        k('v_add_u32 v%d, s%d, v63' % (40 + n, 26 + n))
        for z in range(4):
            k('s_add_u32 m0, s55, %d' % (4096 * n + 1024 * z))
            k('s_mov_b32 s35, %d' % (7168 * z))
            d = k('buffer_load_dwordx4 v%d, %s, s35 offen lds' % (40 + n, SW))
        wd.append(d)
    stamp(k, 9, 3)
    k.wait(zs)
    k('buffer_store_dword v36, v28, %s, 0 offen sc1' % SD)
    stamp(k, 1)
    tr_addr(k, 44, 55, 32, 8)
    consts_a(k)
    raw_dma(k, 1)
    poison(k, 0, OPT['nf'], 52, 50)
    stamp(k, 2, 3)
    for n in range(3):
        k('v_add_u32 v%d, s%d, v%d' % (40 + n, 46 + n, L16))
        k.wait(wd[n])
        tr_read(k, BIG + 16 * n, 44, 4096 * n)
    for n in range(3):
        for t in range(4):
            k('buffer_store_dwordx4 %s, v%d, %s, 0 offen offset:%d sc1' % (vr(BIG + 16 * n + 4 * t, 4), 40 + n, WS, 1024 * t))
    stamp(k, 10, 3)
    k('s_branch k_l1i')

    kidle, k = k, S()
    k('k_l2:')
    k("""s_lshl_b32 s0, s23, 5
    s_add_u32 s0, s0, s32
    s_lshl_b32 s0, s0, 1
    s_add_u32 s0, s0, s24
    s_mul_i32 s0, s0, 14336
    s_add_u32 s0, s0, 0x%x
    s_cmp_ge_u32 s2, 224
    s_cselect_b32 s0, s29, s0
    s_mov_b32 s1, s29
    v_mov_b32 v60, v%d
    v_add_u32 v61, 1024, v%d
    v_lshlrev_b32 v28, 7, v1
    v_add_u32 v29, 6144, v28""" % (X2, L16, L16))
    spin(k, 'k_pr', 'buffer_load_dword v30, v28, %s, s0 offen sc1\nbuffer_load_dword v31, v29, %s, s0 offen sc1' % (WS, WS),
         'v_max_u32 v30, v30, v31\nv_cmp_eq_u32 vcc, -1, v30')
    stamp(k, 0)
    k('s_cmp_ge_u32 s2, 224\ns_cbranch_scc1 k_res')
    xl2 = []
    for ks in range(14):
        if ks and ks % 4 == 0:
            k('s_add_u32 s0, s0, 4096')
        xl2.append(k('buffer_load_dwordx4 %s, v%d, %s, s0 offen offset:%d sc1' % (ar(4 * ks, 4), L16, WS, 1024 * (ks & 3))))
    R1, RP = OPT['r1'], OPT['rp']
    stamp(k, 1)
    k('s_branch k_kloop')
    kl2, k = k, k0

    k('k_kloop:')
    k.append(Seed(xl2))
    k('v_add_u32 v%d, %d, v%d' % (WR, L_WT, L16))
    T0, G0, S0, ONES, ZA = 32, 48, 52, 56, 232

    def wf(ks, t):
        return vr(BIG + 4 * ((4 * ks + t) % 28), 4)

    def wread(s, ks, t):
        return s('ds_read_b128 %s, v%d offset:%d' % (wf(ks, t), WR, 14336 * t + 1024 * ks))
    NP0 = OPT['np0']
    for n in range(NP0):
        wread(k, n // 4, n % 4)
    for i in range(4):
        k('v_mov_b32 v%d, 0x3f803f80' % (ONES + i))
    k("""s_lshl_b32 s34, s23, 5
    s_add_u32 s34, s34, s32
    s_lshl_b32 s35, s24, 10
    s_add_u32 s34, s34, s35
    s_mov_b32 s35, %s
    s_mov_b32 s68, 28672""" % f2h(1 / 448))
    stamp(k, 3)
    q0, q3, q4, f = Q(), Q(), Q(), S()
    for n in range(NP0, 28):
        wread(f, n // 4, n % 4)
    q0.add(f, 0)
    f = S()
    f('v_mov_b32 v28, %s\nv_mul_u32_u24 v%d, 80, v3' % (f2h(1e-5), BP))
    if OPT['zexp']:
        f('v_and_b32 v30, 8, v2\nv_lshlrev_b32 v30, 3, v30\nv_lshl_add_u32 v30, v3, 4, v30\nv_lshl_add_u32 v30, s32, 6, v30\nv_and_b32 v29, 7, v2\nv_mad_u32_u24 v%d, v29, s68, v30' % ZO)
        f('v_add_u32 v251, %d, v%d' % (8 * 28672 - 2048, ZO))
    else:
        f('v_lshlrev_b32 v30, 4, v3\nv_mad_u32_u24 v%d, v2, s68, v30' % ZO)
    f('v_xor_b32 v29, 4096, v%d\nv_xor_b32 v30, 4096, v%d' % (SXW, SXP))
    a_trig(f)
    q4.add(f, 0)
    f = S()
    for n in range(14):
        f('s_add_u32 m0, s39, %d' % (1024 * n))
        if n and n & 1 == 0:
            f('s_add_u32 s1, s1, s100')
        f('buffer_load_dwordx4 v%d, %s, s1 offen sc1 lds' % (60 + (n & 1), SX_))
    q3.add(f, OPT['kd'], OPT['ks'])
    LAG = 4
    mf, q1, q2 = S(), Q(), Q()
    for st in range(14 + LAG):
        if st < 14:
            x = ar(4 * st, 4)
            mf('%s %s, %s, %s, %s' % (MF, vr(G0, 4), x, x, vr(G0, 4) if st else '0'))
            mf('%s %s, %s, %s, %s' % (MF, vr(S0, 4), x, vr(ONES, 4), vr(S0, 4) if st else '0'))
            if st == 13:
                f = S()
                for r in range(4):
                    f('ds_bpermute_b32 v%d, v%d, v%d offset:%d' % (TMP + r, BP, G0 + r, 4 * r))
                for r in range(4):
                    f('v_mul_f32 v%d, s35, v%d' % (S0 + r, S0 + r))
                for r in range(4):
                    f('v_fma_f32 v%d, -v%d, v%d, v28' % (S0 + r, S0 + r, S0 + r))
                q2.add(f, len(mf) + 1)
                f = S()
                for r in range(4):
                    f('v_fma_f32 v%d, v%d, s35, v%d' % (TMP + r, TMP + r, S0 + r))
                for r in range(4):
                    f('v_rsq_f32 v%d, v%d' % (TMP + r, TMP + r))
                f('v_add_f32 v62, v%d, v%d\nv_add_f32 v63, v%d, v%d\nv_cmp_u_f32 vcc, v62, v63' % (TMP, TMP + 1, TMP + 2, TMP + 3))
                q2.add(f, len(mf) + 10)
        ks = st - LAG
        if ks >= 0:
            for t in range(4):
                d = vr(T0 + 4 * t, 4)
                mf('%s %s, %s, %s, %s' % (MF, d, ar(4 * ks, 4), wf(ks, t), d if ks else '0'))
                if ks < 7:
                    f = S()
                    wread(f, ks + 7, t)
                    q1.add(f, len(mf) - 1)
    o, left = sched(mf, [q2, q0, q1, q3, q4])
    g10 = [j for j, x in enumerate(o) if x.cls == 'mfma'][8 + 6 * 6]
    assert not any(x.cls == 'dma' for x in o[:g10])
    o[g10:g10] = [Ins('s_cmp_eq_u32 s3, 0'), Ins('s_cbranch_scc1 k_x10'), Ins('s_waitcnt vmcnt(0)'), Ins('k_x10:')]
    k.extend(o)
    id4 = {id(x) for e, x in q4.items}
    k.extend(x for x in left if x.cls == 'valu' and id(x) not in id4)
    late = S(x for x in left if x.cls != 'valu')
    nd = 14 - sum(x.cls == 'dma' for x in late)
    if OPT['rep']:
        print('K loop left', len(left), 'dma in loop', nd)
    k('s_cbranch_vccnz k_xre\nk_xok:')
    if OPT['late'] == 1:
        k('s_cmp_lg_u32 s3, 0\ns_cbranch_scc1 k_w1\ns_waitcnt vmcnt(%d)' % nd)
        tr_read(k, PW, 88, 0)
        k('k_w1:')
    k1, k = k, S()
    stamp(k, 4)
    AF = BIG
    wr = []
    for nu in range(2):
        for p in range(2):
            t = T0 + 8 * nu + 4 * p
            for r in range(2):
                k('v_pk_mul_f32 %s, %s, %s' % (vr(t + 2 * r, 2), vr(t + 2 * r, 2), vr(TMP + 2 * r, 2)))
        for p in range(2):
            t = T0 + 8 * nu + 4 * p
            for r in range(2):
                k('v_cvt_pk_bf16_f32 v%d, v%d, v%d' % (AF + 4 * nu + 2 * p + r, t + 2 * r, t + 2 * r + 1))
        wr.append(k('ds_write_b128 v%d, %s offset:%d' % (SXW, vr(AF + 4 * nu, 4), 1024 * nu)))

    def st1(x):
        for nu in range(2):
            for z in range(2):
                d = vr(ZA + 8 * nu + 4 * z, 4)
                k('%s %s, %s, %s, %s' % (MF, d, vr(AF + 8 * x + 4 * nu, 4), vr(TRG + 6 * x + (2 if z == 0 else 0), 4), d if x else '0'))
    k.extend(x for x in left if id(x) in id4)
    k.wait(*wr)
    if OPT['late'] == 1:
        k('s_cmp_lg_u32 s3, 0\ns_cbranch_scc1 k_w2')
        w_out(k)
        k('k_w2:')
    k('s_barrier')
    for x in (1, 2, 3):
        for nu in range(2):
            k('ds_read_b128 %s, v%d offset:%d' % (vr(AF + 8 * x + 4 * nu, 4), (None, SXP, 29, 30)[x], 1024 * nu))
    for x in range(4):
        st1(x)
    k1.extend(weave(k, late, only=('valu', 'mfma'), every=OPT['kw']))
    k = k1
    for nu in range(2):
        for r in range(4):
            k('v_cvt_pk_bf16_f32 v%d, v%d, v%d' % (ACC + 20 + 4 * nu + r, ZA + 8 * nu + r, ZA + 8 * nu + 4 + r))
        k('buffer_store_dwordx4 %s, v%d, %s, s37 offen offset:%d sc1' % (vr(ACC + 20 + 4 * nu, 4), 251 if nu and OPT['zexp'] else ZO, WS, 2048 * nu))
    stamp(k, 5)
    k('s_cmp_eq_u32 s3, 0\ns_cbranch_scc1 k_l1t')
    k('k_a2t:')
    wl = WL()
    for n in range(RP + R1, RING):
        wl(k, n)
    k('v_add_u32 v28, s39, v%d\ns_waitcnt vmcnt(%d)' % (L16, RING - RP - R1 + 2))
    for n in range(14):
        k('ds_read_b32 v%d, v28 offset:%d' % (232 + n, 1024 * n))
    for n in range(7):
        k('v_max3_u32 v232, v232, v%d, v%d' % (233 + 2 * n, min(245, 234 + 2 * n)))
    k("""v_cmp_eq_u32 vcc, -1, v232
    s_cbranch_vccnz k_rre
    s_branch k_join""")
    k('k_l1t:')
    k.reset()
    if OPT['late'] == 2:
        k('s_waitcnt vmcnt(16)')
        tr_read(k, PW, 88, 0)
        w_out(k)
    k('k_l1i:')
    k('v_mov_b32 v28, 0\nbuffer_load_dword v63, v28, %s, 0 offen sc1' % SD)
    poison(k, OPT['nf'], OPT['nf'] + OPT['nz'], 56, 35)
    k("""s_lshl_b32 s34, s2, %d
    v_mov_b32 v53, s34
    v_mov_b32 v52, 0x%x
    v_cmp_eq_u32 vcc, 0, v0
    v_cndmask_b32 v%d, v52, v53, vcc
    s_lshl_b32 s34, s24, 7
    s_add_u32 s34, s34, s23
    s_lshl_b32 s34, s34, 6
    v_lshl_add_u32 v%d, v1, 7, s34
    v_mov_b32 v%d, v%d
    v_mov_b32 v52, 1""" % (OPT['fs'], OOB, FV, PA, PZ, L16))
    consts_b(k)
    k("""s_mov_b32 s35, 0x%x
    s_waitcnt vmcnt(%d)
    v_cmp_eq_u32 vcc, 0, v63
    v_mov_b32 v28, 0
    s_nop 4
    s_cbranch_vccz k_flagA""" % (FLG, OPT['nz']))
    spin(k, 'k_pz', 'buffer_load_dword v63, v28, %s, 0 offen sc1' % SD, 'v_cmp_eq_u32 vcc, 0, v63')
    k('k_flagA:')
    k('s_barrier')
    k('buffer_store_dword v52, v%d, %s, s35 offen sc1' % (FV, WS))
    stamp(k, 6)
    NA = min(NPZ, OPT['nf'] + OPT['nz'] + OPT['na'])
    pz, m = S(), S()
    poison(pz, OPT['nf'] + OPT['nz'], NA, 56, 44)
    b_trig(m)
    raw_addr(m)
    if OPT['pa']:
        k.extend(pz[:4])
        k.extend(weave(m, S(pz[4:]), only=('valu',), every=OPT['pa']))
    else:
        k.extend(pz)
        k.extend(m)
    for kp in range(7):
        raw_read(k, kp)
    k('v_add_u32 v28, s39, v%d\ns_waitcnt lgkmcnt(0)' % L16)
    for ks in range(14):
        k('ds_write_b128 v28, %s offset:%d' % (ar(4 * ks, 4), 1024 * ks))
    k('s_waitcnt lgkmcnt(0)')
    k('k_join:')
    k('s_barrier')
    stamp(k, 2 if OPT['stamps'] == 1 else 15)
    SUM, SQ, SV = ACC, ACC + 4, ACC + 8
    k('''v_and_b32 v30, 1, v3
    v_mul_u32_u24 v30, 240, v30
    v_add3_u32 v30, v30, v%d, 8
    s_mul_i32 s35, s28, 28672
    v_lshl_add_u32 v31, v2, 4, s35''' % AD1)
    rdq = []
    for u in range(7):
        for h in range(2):
            b = BIG + 16 * u + 4 * h
            k('ds_read_b64 %s, v%d offset:%d' % (vr(b, 2), AD1, 512 * u + 14336 * h))
            k('ds_read_b32 v%d, v30 offset:%d' % (b + 3, 512 * u + 14336 * h))
            k('ds_read_b64 %s, v%d offset:%d' % (vr(b + 10, 2), AM, 512 * (6 - u) + 14336 * h))
        if u == 6:
            for h in range(2):
                k('ds_read_b32 v%d, v31 offset:%d' % (SV + h, 14336 * h))
        for uu in ([u - 2] if u < 6 else [4, 5, 6]):
            if uu < 0:
                continue
            lo = lambda d, x: k('v_lshlrev_b32 v%d, 16, v%d' % (d, x))
            hi = lambda d, x: k('v_and_b32 v%d, 0xffff0000, v%d' % (d, x))
            for h in range(2):
                b = BIG + 16 * uu + 4 * h
                hi(b + 2, b + 1); lo(b + 1, b + 1); hi(b, b); lo(b + 3, b + 3)
                b += 8
                hi(b, b + 3); lo(b + 1, b + 3); lo(b + 3, b + 2); hi(b + 2, b + 2)
    for h in range(2):
        k('v_lshlrev_b32 v%d, 16, v%d' % (SV + h, SV + h))
    GP = 44
    k("""s_cmp_eq_u32 s3, 0
    s_cselect_b32 s35, 0x{flg:x}, s36
    s_cselect_b32 s34, 0x{oob:x}, 0
    s_cselect_b32 s68, -1, 0xfc0
    v_mov_b32 v28, 0x{oob:x}
    v_and_b32 v{p}, s68, v0
    v_add_u32 v{p1}, s34, v{p}
    v_add_u32 v{p3}, 10240, v{p1}
    v_add_u32 v{p2}, 8192, v{p1}
    v_add_u32 v{p1}, 4096, v{p1}""".format(flg=FLG, oob=OOB, p=GP, p1=GP + 1, p2=GP + 2, p3=GP + 3))
    spin(k, 'k_pg', '\n'.join('buffer_load_dword v%d, v%d, %s, s35 offen sc1' % (GP + 4 + n, GP + n, WS) for n in range(4)),
         '\n'.join('v_cmp_eq_u32 vcc, -1, v%d\nv_cndmask_b32 v%d, v28, v%d, vcc' % (GP + 4 + n, GP + n, GP + n) for n in range(4)) +
         '\nv_max3_u32 v%d, v%d, v%d, v%d\nv_max_u32 v%d, v%d, v%d\nv_cmp_eq_u32 vcc, -1, v%d' % (GP + 4, GP + 4, GP + 5, GP + 6, GP + 4, GP + 4, GP + 7, GP + 4))
    k('s_barrier')
    stamp(k, 7)
    slow = S()

    def prologue(k):
        wl = WL()
        nl = [0]

        def wload(s, cnt=1):
            for _ in range(cnt):
                if nl[0] < RP:
                    wl(s, nl[0])
                    nl[0] += 1
        dma = []
        for u in range(7):
            if u % 2 == 0:
                k('s_add_u32 m0, s39, %d\ns_add_u32 s35, s36, %d' % (2048 * u, 2048 * u))
            for ks in range(2):
                d = k('buffer_load_dwordx4 v%d, %s, s35 offen offset:%d sc1 lds' % (L16, WS, (u % 2) * 2048 + 1024 * ks))
            dma.append(d)
        wload(k, OPT['pre1'])

        def zf(u):
            return TRG + 8 * (u % 3)

        def unit_rd(u):
            return '\n'.join('ds_read2st64_b32 %s, v%d offset0:%d offset1:%d' % (vr(zf(u) + 2 * x, 2), ZR, 8 * u + 2 * x, 8 * u + 2 * x + 1) for x in range(4))

        def unit_pre(s, u):
            s.wait(dma[u])
            s(unit_rd(u))

        def unit_chk(s, u):
            z = zf(u)
            c = """v_max3_u32 v44, v%d, v%d, v%d
            v_max3_u32 v45, v%d, v%d, v%d
            v_max3_u32 v44, v44, v%d, v%d
            v_max_u32 v44, v44, v45
            v_cmp_eq_u32 vcc, -1, v44""" % tuple(range(z, z + 8))
            s(c)
            s('s_cbranch_vccnz k_zs%d\nk_zb%d:' % (u, u))
            slow('k_zs%d:\ns_add_u32 m0, s39, %d\ns_add_u32 s35, s36, %d' % (u, 2048 * u, 2048 * u))
            spin(slow, 'k_zp%d' % u, '\n'.join('buffer_load_dwordx4 v%d, %s, s35 offen offset:%d sc1 lds' % (L16, WS, 1024 * ks) for ks in range(2)),
                 unit_rd(u) + '\ns_waitcnt lgkmcnt(0)\n' + c)
            slow('s_branch k_zb%d' % u)

        def unit_stats(s, u):
            b = BIG + 16 * u
            if u == 6:
                s('v_cndmask_b32 v%d, v%d, v%d, s[50:51]' % (b + 11, b + 11, SV))
                s('v_cndmask_b32 v%d, v%d, v%d, s[50:51]' % (b + 15, b + 15, SV + 1))
            for r in range(4):
                for sl in range(4):
                    x = b + 4 * sl + r
                    if u == 0 and r == 0:
                        s('v_mul_f32 v%d, v%d, v%d' % (SQ + sl, x, x))
                    else:
                        s('v_add_f32 v%d, v%d, v%d' % (SUM + sl, x - 1 if u == 0 and r == 1 else SUM + sl, x))
                        s('v_fmac_f32 v%d, v%d, v%d' % (SQ + sl, x, x))
        unit_pre(k, 0)
        unit_chk(k, 0)
        stamp(k, 8)
        for u in range(7):
            m, f = S(), S()
            for ks in range(2):
                for sl in range(4):
                    d = vr(BIG + 16 * u + 4 * sl, 4)
                    m('%s %s, %s, %s, %s' % (MF, d, vr(zf(u) + 4 * ks, 4), vr(btrg(sl >> 1, sl & 1, ks), 4), d))
            if u < 6:
                unit_pre(f, u + 1)
            if u:
                unit_stats(f, u - 1)
            wload(f, OPT['pu'])
            k.extend(weave(m, f, per=4))
            if u < 6:
                unit_chk(k, u + 1)
        unit_stats(k, 6)
        for b in (SUM, SQ):
            k('v_permlane32_swap_b32 v%d, v%d\nv_permlane32_swap_b32 v%d, v%d' % (b, b + 2, b + 1, b + 3))
        for b in (SUM, SQ):
            k('v_add_f32 v%d, v%d, v%d\nv_add_f32 v%d, v%d, v%d' % (b, b, b + 2, b + 1, b + 1, b + 3))
        for b in (SUM, SQ):
            k('v_permlane16_swap_b32 v%d, v%d' % (b, b + 1))
        k('v_add_f32 v%d, v%d, v%d\nv_add_f32 v%d, v%d, v%d' % (SV, SUM, SUM + 1, SV + 1, SQ, SQ + 1))
        w = k('ds_write_b64 v%d, %s' % (STW, vr(SV, 2)))
        k('s_mov_b32 s35, %s\nv_mov_b32 v28, %s' % (f2h(1 / 448), f2h(1e-5)))
        wload(k, 2)
        k.wait(w)
        k('s_barrier')
        R = ACC + 12
        k('ds_read_b128 %s, v%d\nds_read_b128 %s, v%d offset:16' % (vr(R, 4), STR, vr(R + 4, 4), STR))
        wload(k, 2)
        P = ACC + 20
        k('''v_pk_add_f32 v[{r0}:{r1}], v[{r0}:{r1}], v[{r2}:{r3}]
        v_pk_add_f32 v[{r4}:{r5}], v[{r4}:{r5}], v[{r6}:{r7}]
        v_pk_add_f32 v[{r0}:{r1}], v[{r0}:{r1}], v[{r4}:{r5}]
        v_mul_f32 v{r0}, s35, v{r0}
        v_fma_f32 v{r1}, v{r1}, s35, v28
        v_fma_f32 v{r1}, -v{r0}, v{r0}, v{r1}
        v_rsq_f32 v{r2}, v{r1}
        v_mul_f32 v{r1}, {il}, v{r1}
        v_mul_f32 v{p0}, {nl}, v{r2}
        v_mul_f32 v{p1}, -v{r0}, v{p0}
        v_mul_f32 v{p2}, {nl}, v{r2}
        v_mul_f32 v{p3}, -v{r0}, v{p0}
        v_mul_f32 v{r1}, v{r1}, v{r2}
        v_permlane16_swap_b32 v{p0}, v{p2}
        v_permlane16_swap_b32 v{p1}, v{p3}
        ds_write_b64 v{fw}, v[{r0}:{r1}]
        v_mov_b32 v{p4}, v{p0}
        v_mov_b32 v{p5}, v{p1}
        v_mov_b32 v{p6}, v{p2}
        v_mov_b32 v{p7}, v{p3}
        v_permlane32_swap_b32 v{p0}, v{p4}
        v_permlane32_swap_b32 v{p1}, v{p5}
        v_permlane32_swap_b32 v{p2}, v{p6}
        v_permlane32_swap_b32 v{p3}, v{p7}'''.format(il=f2h(-1 / LOG2E), nl=f2h(-LOG2E), fw=FINW,
                                                    **{'r%d' % i: R + i for i in range(8)}, **{'p%d' % i: P + i for i in range(8)}))
        for u in range(7):
            for sl in range(4):
                b = BIG + 16 * u + 4 * sl
                for r in range(2):
                    k('v_pk_fma_f32 %s, %s, %s, %s op_sel:[0,0,1] op_sel_hi:[1,0,1]' % (vr(b + 2 * r, 2), vr(b + 2 * r, 2), vr(P + 2 * sl, 2), vr(P + 2 * sl, 2)))
            for sl in range(4):
                b = BIG + 16 * u + 4 * sl
                if sl < 2:
                    k('v_cvt_pk_bf16_f32 v%d, v%d, v%d\nv_cvt_pk_bf16_f32 v%d, v%d, v%d' % (b, b, b + 1, b + 1, b + 2, b + 3))
                    w = k('ds_write_b64 v%d, %s offset:%d' % (AD1, vr(b, 2), 512 * u + 14336 * sl))
                else:
                    k('v_cvt_pk_bf16_f32 v%d, v%d, v%d\nv_cvt_pk_bf16_f32 v%d, v%d, v%d' % (b + 1, b + 1, b, b, b + 3, b + 2))
                    w = k('ds_write_b64 v%d, %s offset:%d' % (AM, vr(b, 2), 512 * (6 - u) + 14336 * (sl - 2)))
            wload(k, 2)
        wload(k, RING)
        k('s_cmp_lg_u32 s3, 0\ns_cbranch_scc1 k_gemm')
        wl = WL()
        for n in range(RP, RING):
            wl(k, n).opt = True
        k('k_gemm:')
        k.wait(w)
    prologue(k)
    k('s_barrier')
    stamp(k, 9)

    def lowreg(n):
        return ar(4 * n, 4) if n < 16 else vr(208 + 4 * (n - 16), 4)

    def xn(a, ks):
        return lowreg(4 * ks + a) if ks < 7 else vr(BIG + 16 * (ks - 7) + 4 * a, 4)
    A2, HV, O0, X1, D0, E0, MU, RW = BIG + 48, 88, 94, 48, 244, 252, 254, 44
    NM = 392 + 224

    CG = OPT['cg']
    P2 = OPT['nf'] < NPZ

    def hoff(x):
        st = x // 4
        return (st & 1) * 64 * 28672 + (st >> 1) * 4096

    def hchk(regs):
        r = [int(re.match(r'v\[(\d+):', x).group(1)) for x in regs]
        out = ['v_bitop3_b32 v%d, v%d, v%d, s3 bitop3:0x7e' % (CK, r[0], r[1])]
        for x in r[2:]:
            out.append('v_bitop3_b32 v%d, v%d, v%d, s3 bitop3:0xf6' % (CK, CK, x))
        return '\n'.join(out + ['v_and_b32 v%d, 1, v%d' % (CK, CK), 'v_cmp_ne_u32 vcc, 0, v%d' % CK])

    def build(est):
        use = {n: (4 * n, 4 * n + 3) for n in range(98)}
        order2, horder = [], []
        for st in range(14):
            ao = (0, 1, 2, 3) if st < 13 else (1, 2, 3, 0)
            o_ = [(a, t) for t in range(4) for a in ao] if st < 13 and not OPT['amaj'] else [(a, t) for a in ao for t in range(4)]
            horder += [4 * st + a for a in ao]
            for j, (a, t) in enumerate(o_):
                g = 392 + 16 * st + j
                for key in (98 + 4 * st + t, ('h', 4 * st + a)):
                    use[key] = (use.get(key, (g, g))[0], g)
                order2.append((st, a, t))
        groups = [horder[j:j + CG] for j in range(0, 56, CG)]
        need = {}
        for gr in groups:
            for x in gr:
                need[x] = use[('h', gr[0])][0] - OPT['ck']
        plan, pace, n = [], 3.0, RING
        while pace < 334:
            plan.append(('w', n, pace))
            n += 1
            pace += OPT['p1'] / 10
        chk = [OPT['ca'], OPT['cb'], OPT['cc'], OPT['cs'], 9999]
        hb = [0, 16, 32, 48, 56]
        for ph in range(4):
            pace = max(pace, chk[ph])
            todo = horder[hb[ph]:hb[ph + 1]]
            while todo or (n < len(SEQ) and pace < chk[ph + 1]):
                if todo and (n >= len(SEQ) or need[todo[0]] <= use[n][0]):
                    plan.append(('h', todo.pop(0), pace))
                elif n < len(SEQ):
                    plan.append(('w', n, pace))
                    n += 1
                pace += OPT['pc'] / 10
        pool = [(use[x][1], slot(x)) for x in range(RING)] + [(376 + x, lowreg(x)) for x in range(16)]
        hpool = [(336 + x, vr(BIG + 4 * x, 4)) for x in range(12)] + [(348 + x, lowreg(16 + x)) for x in range(9)]
        hpool += [(est.get(('st', 2, 1), 999) + 1, vr(ACC + 4 * x, 4)) for x in range(3)]
        hpool += [(est.get('bar', 999) + 1, vr(ACC + 40 + 4 * x, 4)) for x in range(2)]
        hpool += [(est.get(('st', 3, 0), 999) + 1, vr(b, 4)) for b in (ACC + 32, ACC + 36, ACC + 48, ACC + 52)]
        reg = {x: slot(x) for x in range(RING)}
        dead = []
        qx, ql, qe, qs, qa, qc = Q(), Q(), Q(), Q(), Q(), Q()
        wl = WL()
        hld = {}
        for kind, x, e in plan:
            s = S()
            key = x if kind == 'w' else ('h', x)
            pl_ = pool if kind == 'w' else hpool
            pl_.sort(key=lambda z: z[0])
            fr, r = pl_.pop(0)
            reg[key] = r
            pl_.append((use[key][1], r))
            e = max(e, fr)
            if kind == 'w':
                ld = wl(s, x, r)
                dead.append((ld, use[key][0] - 8))
            else:
                w_ = wl.window(s, 41 if OPT['hw2'] else 43, hoff(x))
                ld = hld[x] = s('buffer_load_dwordx4 %s, v%d, %s, s%d offen sc1' % (r, HV + x % 4, WS, w_))
                dead.append((ld, need[x] - 8))
            ql.add(s, e)
        brs = []
        for j, gr in enumerate(groups):
            if OPT['nochk']:
                break
            s = S()
            s(hchk([reg[('h', x)] for x in gr]))
            brs.append(s('s_cbranch_vccnz k_hs%d' % j))
            s('k_hb%d:' % j)
            qc.add(s, need[gr[0]])
            dead.append((brs[-1], use[('h', gr[0])][0] - 1))
        mf = S()
        for p in range(3):
            for ks in range(14):
                for mat in range(2):
                    for a in range(4):
                        d = vr(ACC + 32 * (p & 1) + 16 * mat + 4 * a, 4)
                        mf('%s %s, %s, %s, %s' % (MF, d, reg[len(mf) // 4], xn(a, ks), d if ks else '0'))
        for j, ks in enumerate(SORD):
            for a in range(4):
                d = vr(ACC + 32 + 4 * a, 4)
                mf('%s %s, %s, %s, %s' % (MF, d, reg[len(mf) // 4], xn(a, ks), d if j else '0'))
        for st, a, t in order2:
            d = vr(A2 + 16 * a + 4 * t, 4)
            mf('%s %s, %s, %s, %s' % (MF, d, reg[98 + 4 * st + t], reg[('h', 4 * st + a)], d if st else '0'))
        assert len(mf) == NM
        pre = S()
        NPRE = 8
        for n in range(56):
            ks, a = n // 4, n % 4
            s = pre if n < NPRE else S()
            r = s('ds_read_b128 %s, v%d offset:%d' % (xn(a, ks), VO if a < 2 else VT, 14336 * (a & 1) + 1024 * ks))
            if n >= NPRE:
                qx.add(s, (n - NPRE) // 2 * 3)
                dead.append((r, 8 * ks + a - 6))
        un = [0]

        def unit(s, G, U, R, sel=False):
            t = TMP + 4 * (un[0] & 1)
            un[0] += 1
            if sel:
                for j in range(4):
                    s('v_cndmask_b32 v%d, v%d, v%d, s[52:53]' % (t + j, G + j, U + j))
            for j in range(4):
                s('v_exp_f32 v%d, v%d' % (t + j, t + j if sel else G + j))
            for j in range(4):
                s('v_mul_f32 v%d, v%d, v%d' % (G + j, G + j, U + j))
            for j in range(4):
                s('v_fma_f32 v%d, v%d, s54, s54' % (t + j, t + j))
            for j in range(4):
                s('v_rcp_f32 v%d, v%d' % (t + j, t + j))
            for j in range(4):
                s('v_mul_f32 v%d, v%d, v%d' % (t + j, t + j, G + j))
            for j in range(2):
                s('v_cvt_pk_bf16_f32 v%d, v%d, v%d' % (R + j, t + 2 * j, t + 2 * j + 1))
        mark = {}

        def pair(s, G, ph, P, sel=False):
            for z in range(2):
                unit(s, G + 4 * z, G + 16 + 4 * z, G + 2 * z, sel)
            if 0 < ph < 3 and P == 0:
                s('s_add_u32 s44, s42, %d' % (8192 * ph))
            for j in range(2):
                s('v_permlane32_swap_b32 v%d, v%d' % (G + j, G + 2 + j))
            s('v_bfi_b32 v%d, 1, s3, v%d' % (G, G))
            mark[('st', ph, P)] = s('buffer_store_dwordx4 %s, v%d, %s, s%d offen sc1' % (vr(G, 4), (HO, HT)[P] if ph < 3 else HS, WS, 44 if 0 < ph < 3 else 42))
        if P2:
            if NA < NPZ:
                s = S()
                poison(s, NA, NPZ, TMP, 44)
                pst = [x for x in s if x.cls == 'vst']
                for x in pst:
                    x.__init__(x.text.replace(', v%d, ' % L16, ', v%d, ' % PZ))
                qs.add(S(s[:4]), 0)
                qs.add(S(s[4:]), OPT['ng0'], OPT['ngs'])
                dead.append((pst[-1], 110))
                s = S()
                s.wait(*pst)
                mark['pb'] = s('s_barrier')
                qs.add(s, OPT['g2f'] - 2)
            s = S()
            s('s_mov_b32 s34, 0x%x' % FLG)
            s('buffer_store_dword v%d, v%d, %s, s34 offen sc1' % (L16, FV, WS))
            qs.add(s, OPT['g2f'])
            s = S()
            p2 = s('buffer_load_dword v%d, v%d, %s, s34 offen sc1' % (PD, PA, WS))
            qs.add(s, OPT['g2p'])
            s = S()
            s.wait(p2)
            s('v_cmp_ne_u32 vcc, 0, v%d\ns_cbranch_vccnz k_p2\nk_p2b:' % PD)
            mark['p2'] = s[-2]
            qs.add(s, OPT['g2c'])
        s = S()
        sw = [s('ds_write_b128 v%d, %s offset:%d' % (SXW, vr(ACC + 32 + 8 + 4 * z, 4), 1024 * z)) for z in range(2)]
        qs.add(s, 394)
        mark['sw'] = sw[1]
        for p in range(3):
            s = S()
            for P in range(2):
                pair(s, ACC + 32 * (p & 1) + 8 * P, p, P)
            qe.add(s, 112 * (p + 1) + 2)
            if p < 2:
                dead.append((mark[('st', p, 1)], 112 * (p + 2) - 2))
        c1 = S()
        c1('v_lshl_add_u32 v%d, s20, 10, v%d' % (HV, L16))
        for a in range(1, 4):
            c1('v_xor_b32 v%d, %d, v%d' % (HV + a, 1024 * a, HV))
        mark['hv'] = c1[-1]
        mark['c1'] = c1[0]
        qa.add(c1, est.get(('st', 1, 1), 0) + 1)
        c2 = S()
        c2("""v_add_u32 v{d}, s56, v{L16}
        v_min_u32 v{e}, 1, v3
        v_add_u32 v{e1}, s58, v{d}
        v_mad_i32_i24 v{e}, v{e}, s69, v{e1}
        v_add_u32 v{e1}, s57, v{d}
        v_lshl_add_u32 v{mu}, s20, 4, v2
        v_lshlrev_b32 v{mu}, 3, v{mu}
        v_add_u32 v{mu}, {fin}, v{mu}
        ds_read_u16 v{e}, v{e}
        ds_read_u16 v{e1}, v{e1}
        ds_read_b64 v[{mu}:{sg}], v{mu}
        ds_read_b128 v[{d4}:{d7}], v{d} offset:1024
        ds_read_b128 v[{d}:{d3}], v{d}""".format(d=D0, d3=D0 + 3, d4=D0 + 4, d7=D0 + 7, e=E0, e1=E0 + 1, mu=MU, sg=MU + 1, fin=L_FIN, L16=L16))
        mark['gath'] = c2[-1]
        qa.add(c2, max(362, est.get(('st', 2, 1), 0) + 1))
        s = S()
        s.wait(*(sw + [c2[-1]]))
        mark['bar'] = s('s_barrier')
        for z in range(2):
            s('ds_read_b128 %s, v%d offset:%d' % (vr(ACC + 48 + 4 * z, 4), SXP, 1024 * z))
        qe.add(s, OPT['sb'])
        s = S()
        pair(s, ACC + 32, 3, 0, True)
        qe.add(s, est.get('bar', 0) + 4)
        s = S()
        for P in range(2):
            for j in range(8):
                x, d = X1 + 8 * P + j, D0 + 4 * P + j // 2
                if j == 0:
                    s('v_lshlrev_b32 v%d, 16, v%d' % (x, E0 + P))
                else:
                    s('v_perm_b32 v%d, v%d, v%d, s%d' % (x, d, d - 1, 59 + (1 - j % 2)))
        for j in range(16):
            s('v_fma_f32 v%d, v%d, v%d, v%d' % (X1 + j, X1 + j, MU + 1, MU))
        s("""v_mul_u32_u24 v{o}, s61, v2
        v_mad_u32_u24 v{o}, v3, s63, v{o}
        v_add_u32 v{o}, s55, v{o}
        v_add_u32 v{o1}, 1, v3
        v_lshrrev_b32 v{o1}, 2, v{o1}
        v_lshl_add_u32 v{o1}, v{o1}, 31, v{o}
        v_lshl_add_u32 v{o1}, s63, 2, v{o1}
        v_add_u32 v{r3}, s39, v{L16}""".format(o=O0, o1=O0 + 1, r3=RW + 3, L16=L16))
        for a in range(1, 4):
            s('v_lshrrev_b32 v%d, 10, v%d\nv_mul_u32_u24 v%d, 14336, v%d\nv_add_u32 v%d, v%d, v%d' % (RW + a - 1, HV + a, RW + a - 1, RW + a - 1, RW + a - 1, RW + a - 1, L16))
        qe.add(s, 0)
        rw = []
        for a in range(1, 4):
            s = S()
            for t in range(4):
                rw.append(s('ds_write_b128 v%d, %s offset:%d' % (RW + a - 1, vr(A2 + 16 * a + 4 * t, 4), 1024 * (4 * (a - 1) + t))))
            qe.add(s, NM - 16 + 4 * (a - 1) + 3, 1)
        log = {}
        c1_ = est.get(('st', 3, 0), 999) + 1 if OPT['c1'] == 0 else OPT['c1']
        o, left = sched(mf, [qx, qs, ql, qc, qa, qe] if OPT['qp'] else [qx, qc, qs, ql, qa, qe], log, lambda g: 4 if OPT['c0'] <= g < c1_ else 2)
        got = {key: log.get(id(v), 9999) for key, v in mark.items()}
        return pre, o, left, got, dead, log, rw, groups, brs, hld, reg
    est = {}
    for it in range(12):
        pre, o, left, got, dead, log, rw, groups, brs, hld, reg = build(est)
        if all(got[x] <= est.get(x, -1) for x in got):
            break
        est = {x: got[x] if it < 4 else max(got[x], est[x]) for x in got}
    else:
        assert 0
    if OPT['rep']:
        print(sorted(got.items(), key=lambda z: z[1]), 'left', len(left))
        print('at/lead', [('h' if 'v[' in i.ops[0] else '') + '%d/%d' % (log.get(id(i), 9999), d + 8 - log.get(id(i), 9999)) for i, d in dead if i.cls == 'vld' and log.get(id(i), 9999) > 320])
    for ins, d in dead:
        assert log.get(id(ins), 9999) <= d, (ins.text, log.get(id(ins)), d)
    assert got['sw'] < got['bar'] - 1 and got['gath'] < got['bar'] - 1 and got['hv'] < 336 and got[('st', 1, 1)] < got['c1']
    assert not P2 or got['p2'] < 335
    pos = {id(x): j for j, x in enumerate(o)}
    for j, br in enumerate(brs):
        ld, w_ = [], None
        for gr in groups[j:]:
            for x in gr:
                if pos[id(hld[x])] < pos[id(br)]:
                    if hoff(x) != w_:
                        w_ = hoff(x)
                        ld.append('s_add_u32 s35, s43, %d' % w_)
                    ld.append('buffer_load_dwordx4 %s, v%d, %s, s35 offen sc1' % (reg[('h', x)], HV + x % 4, WS))
        slow('k_hs%d:' % j)
        if OPT['stamps']:
            slow('s_add_u32 s45, s45, %d' % (1 << (8 * min(3, groups[j][0] // 16))))
        spin(slow, 'k_hp%d' % j, '\n'.join(ld), hchk([reg[('h', x)] for x in groups[j]]))
        slow('s_branch k_hb%d' % j)
    if OPT['stamps'] in (1, 2):
        for g_, n_ in ((520, 12), (392, 10)) if OPT['stamps'] == 1 else list(zip(SG, (1, 2, 3, 4, 5, 6, 8, 10, 12)))[::-1]:
            i = [j for j, x in enumerate(o) if x.cls == 'mfma'][g_]
            s = S()
            stamp(s, n_, True)
            o[i + 1:i + 1] = s
    if OPT['nost']:
        o = [x for x in o if x.cls != 'vst']
    if OPT['stamps']:
        k('s_mov_b32 s45, 0')
    k.extend(pre)
    k.extend(o)
    k.extend(left)
    stamp(k, 11)
    for j in range(8):
        k('v_pk_add_f32 %s, %s, %s' % (vr(A2 + 2 * j, 2), vr(A2 + 2 * j, 2), vr(X1 + 2 * j, 2)))
    if P2:
        slow('k_p2:')
        spin(slow, 'k_p2s', 'buffer_load_dword v%d, v%d, %s, s34 offen sc1' % (PD, PA, WS), 'v_cmp_ne_u32 vcc, 0, v%d' % PD)
        slow('s_branch k_p2b')
    k.wait(*rw)
    k('s_barrier')
    for P in range(2):
        for a in range(3):
            for t in range(2 * P, 2 * P + 2):
                k('ds_read_b128 %s, v%d offset:%d' % (vr(BIG + 16 * a + 4 * t, 4), RW + 3, 1024 * (4 * a + t)))
    for P in range(2):
        for a in range(3):
            for j in range(4 * P, 4 * P + 4):
                k('v_pk_add_f32 %s, %s, %s' % (vr(A2 + 2 * j, 2), vr(A2 + 2 * j, 2), vr(BIG + 16 * a + 2 * j, 2)))
        b = A2 + 8 * P
        for j in range(4):
            k('v_cvt_pk_bf16_f32 v%d, v%d, v%d' % (b + j, b + 2 * j, b + 2 * j + 1))
    stamp(k, 13)
    k('s_cmp_lg_u32 s3, 0\ns_cbranch_scc1 k_fin')
    for u_ in range(2):
        xs = k('buffer_store_dwordx4 %s, v%d, %s, 0 offen sc1' % (vr(A2 + 8 * u_, 4), O0 + u_, WS))
    wl = WL()
    for n in range(RP, RP + R1):
        wl(k, n)
    stamp(k, 14)
    stamp_save(k, 0)
    b_trig(k)
    k("""s_mov_b32 s3, 1
    s_mov_b32 s100, 2048
    s_mov_b32 s101, 0x4000
    s_mov_b32 s4, s8
    s_mov_b32 s5, s9
    s_mov_b32 s6, s10
    s_add_u32 s36, s36, 0x%x
    s_add_u32 s37, s37, 0x%x
    v_mov_b32 v%d, 0x%x
    v_mov_b32 v%d, 0x%x
    v_mov_b32 v%d, 0x%x
    s_lshl_b32 s55, s24, 10
    s_add_u32 s55, s55, s27
    s_mul_i32 s55, s55, 896
    s_mul_i32 s35, s22, 112
    s_add_u32 s55, s55, s35
    s_mov_b32 s61, 57344
    s_mov_b32 s63, 16""" % (Z2 - Z1, Z2 - Z1, FV, OOB, PA, OOB, PZ, OOB))
    k.extend(kl2)
    k('k_fin:')
    k.reset()
    for u_ in range(2):
        k('buffer_store_dwordx4 %s, v%d, %s, 0 offen' % (vr(A2 + 8 * u_, 4), O0 + u_, SO))
    if OPT['stamps']:
        k('s_waitcnt vmcnt(0)')
        stamp(k, 14)
        stamp_save(k, 1)
        k('''s_lshl_b32 s35, s2, 2
        s_add_u32 s35, s35, s20
        s_lshl_b32 s35, s35, 8
        s_add_u32 s35, s35, 0x%x
        v_lshlrev_b32 v28, 2, v1
        buffer_store_dword v%d, v28, %s, s35 offen''' % (STP, STV, WS))
    k('k_end:\ns_endpgm')
    k.extend(slow)
    k.reset()
    k("""k_xre:
    s_cmp_eq_u32 s101, 0
    s_cbranch_scc1 k_xok
    s_sub_u32 s101, s101, 1
    s_waitcnt vmcnt(0) lgkmcnt(0)
    s_nop 7
    s_nop 7
    s_branch k_l2""")
    k("""k_rre:
    s_cmp_eq_u32 s101, 0
    s_cbranch_scc1 k_join
    s_sub_u32 s101, s101, 1
    s_mov_b32 s1, s29
    k_res:""")
    for n in range(14):
        k('s_add_u32 m0, s39, %d' % (1024 * n))
        if n and n & 1 == 0:
            k('s_add_u32 s1, s1, s100')
        k('buffer_load_dwordx4 v%d, %s, s1 offen sc1 lds' % (60 + (n & 1), SX_))
    k('s_waitcnt vmcnt(0)\ns_branch k_a2t')
    k.extend(kidle)
    k('k_last:')
    k('s_endpgm')
    return k


HDR = open('cdna_kernels/%s.s.ref' % NAME).read().split('; Override launch geometry')[0]


def main():
    out = [HDR.rstrip()]
    if OPT['stamps'] == 2:
        out.append('; SG ' + ' '.join(map(str, SG)))
    if OPT['stamps'] == 3:
        out.append('; S3')
    out.append('; @launch grid=(256,1,1) block=(256,1,1) lds=%d' % LDS)
    out.append('.amdgcn_target "amdgcn-amd-amdhsa--gfx950"\n.text')
    out += finalize(gen())
    out.append('''.section .rodata,"a"
.p2align 6
.amdhsa_kernel %s_kernel
  .amdhsa_next_free_vgpr 512
  .amdhsa_next_free_sgpr 102
  .amdhsa_accum_offset 256
  .amdhsa_group_segment_fixed_size 0
  .amdhsa_kernarg_size 96
  .amdhsa_user_sgpr_count 2
  .amdhsa_user_sgpr_kernarg_segment_ptr 1
  .amdhsa_system_sgpr_workgroup_id_x 1
.end_amdhsa_kernel
''' % NAME)
    open(sys.argv[1], 'w').write('\n'.join(out) + '\n')


main()
```

```python
import sys, os, struct, re
sys.path.insert(0, os.path.dirname(os.path.abspath(__file__)))
from asmlib import *

NAME = 'interleave_layers__spectral_fnet__swiglu_ffn__prompt'
W1P, W2P, Z1, Z2, X2, FLG, STP, PART = 0, 0x310000, 0x500000, 0x700000, 0x8C0000, 0xB00000, 0xB10000, 0xC00000
WSN = 0x1A00000
XBYTES = 1835008
OOB = 0x80000000
OPT = dict(stamps=0, clk=0, r1=8, rp=40, nt=16, t0=556, tp=30, nb=14, ca2=300, cb2=385, cc2=455, cs2=510, pc2=40, p12=45, pA=28, pB=28, pA2=52, pB2=44, pk=0, rot=1, cap=4, cap2=4, sp=1, tch=0, c02=336, xl=14, nr=0, nr2=1, hb=0, a0=4, pre1=10, ev=4, ord=0, f0=2, late=1, ws0=60, cpf=0, nf=0, nz=0, na=11, pa=14, er=1, pd=0, np2=1, wa=12, skip=0, tt=0, wn=0, msk=0, mw=0, mh=0, ms=0, ng0=6, ngs=12, pm=0, g2f=4, g2p=200, g2c=320, pw0=110, pev=5, cg=4, ck=5, qp=1, ca=336, amaj=1, sb=397, pu=3, kd=46, ks=5, kw=6, np0=8, zexp=0, rep=0, fs=6, fl=35, cb=385, cc=450, cs=505, pl=25, c0=336, c1=0, pc=28, p1=36, nochk=0, hw2=0, nost=0, nop2=0)
SG = [112, 224, 260, 336, 392, 456, 490, 520, 584]
for a in sys.argv[2:]:
    k_, v_ = a.split('=')
    if k_ == 'sg':
        SG = [int(x) for x in v_.split(',')]
    else:
        OPT[k_] = int(v_)
MF = 'v_mfma_f32_16x16x32_bf16'
L_WT, L_H, L_ST, L_FIN, L_SX, LDS = 57344, 114688, 151552, 153600, 155648, 163840
RING = 64
SA0 = 114
LOG2E = 1.4426950408889634
SX_, WS, SO, SW, SD = 's[4:7]', 's[8:11]', 's[12:15]', 's[16:19]', 's[64:67]'
L16, ZR, AD1, AM, VO, VT, HO, HT, HS, PZ, STW, STR, FINW, SXW, SXP, PD, PA = range(4, 21)
WR, ZO, BP = 248, 249, 250
BTR = 64
STV = 23
TMP, ACC, BIG, TRG = 24, 32, 96, 208
SPIN = 0x20000
MOD = ('sc1', 'sc0 sc1', 'sc1 nt', 'sc0 sc1 nt', '', 'nt', 'sc0')
HG1 = PART
NPZ = 11
FV, CK = 22, 21


def f2h(x):
    return '0x%08x' % struct.unpack('<I', struct.pack('<f', x))[0]


def stamp(k, i, force=False):
    if i == 15:
        return
    if OPT['stamps'] == 2 and i in (1, 2, 3, 4, 5, 6, 8, 10, 12) and not force:
        return
    if OPT['stamps'] == 3 and i in (8, 9, 10, 11, 12, 13) and not force:
        return
    if OPT['stamps'] != 3 and force == 3:
        return
    if OPT['stamps']:
        k('%s s[%d:%d]' % ('s_memtime' if OPT['clk'] else 's_memrealtime', 70 + 2 * i, 71 + 2 * i))


def stamp_save(k, lay):
    if OPT['stamps']:
        k('s_waitcnt lgkmcnt(0)')
        for i in range(15):
            k('v_writelane_b32 v%d, s%d, %d' % (STV, 70 + 2 * i, 16 * lay + i))
        k('v_writelane_b32 v%d, s45, %d\ns_mov_b32 s45, 0' % (STV, 32 + lay))


def srd(k, d, lo, n):
    if lo != d:
        k('s_mov_b32 s%d, s%d\ns_mov_b32 s%d, s%d' % (d, lo, d + 1, lo + 1))
    k('s_mov_b32 s%d, 0x%x\ns_mov_b32 s%d, 0x00020000' % (d + 2, n, d + 3))


def spin(k, name, load, cmp):
    k('s_mov_b32 s68, 0')
    k('%s:' % name)
    k(load)
    k('s_add_u32 s68, s68, 1\ns_waitcnt vmcnt(0)')
    k(cmp)
    k('''s_cmp_ge_u32 s68, 0x%x
    s_cbranch_scc1 %s_go
    s_nop 2
    s_cbranch_vccnz %s''' % (SPIN, name, name))
    k('%s_go:' % name)


SEQ = [((40, 21, 25)[p], 1024 * x) for p in range(3) for x in range(28)]
SORD = [0, 1, 3, 10, 12, 5, 7, 9, 2, 4, 11, 13, 6, 8]
SEQ += [(38, 2048 * ks) for ks in SORD]
SEQ += [((26, 31, 33)[x // 16], 1024 * (x % 16)) if x < 48 else (41, 1024 * x) for x in range(56)]
KS2 = [1, 2, 3, 4, 5, 6, 0]


def slot(n):
    return ar(4 * n, 4)


def staged(n):
    return n - 140 if n >= 140 else n - SA0 + 14


class WL:
    def __init__(self):
        self.win = {}
        self.cnt = 0

    def window(self, s, b, off):
        key = (b, off >> 12)
        if self.win.get(key) is None:
            reg = 46 + self.cnt % 4
            self.cnt += 1
            for x in self.win:
                if self.win[x] == reg:
                    self.win[x] = None
            self.win[key] = reg
            s('s_add_u32 s%d, s%d, %d' % (reg, b, off & ~4095))
        return self.win[key]

    def dma(self, s, n):
        b, off = SEQ[n]
        reg = self.window(s, b, off)
        s('s_add_u32 m0, s62, %d' % (4096 * staged(n) - (off & 4095)))
        return s('buffer_load_dwordx4 v%d, %s, s%d offen offset:%d sc1 lds' % (L16, WS, reg, off & 4095))

    def __call__(self, s, n, dst=None):
        b, off = SEQ[n]
        reg = self.window(s, b, off)
        return s('buffer_load_dwordx4 %s, v%d, %s, s%d offen offset:%d %s' % (dst or slot(n), L16, WS, reg, off & 4095, MOD[OPT['mw']]))


def raw_dma(k, soff):
    out = []
    for kp in range(7):
        for o in range(2):
            k('s_add_u32 m0, s39, %d' % (kp * 2048 + o * 1024 - 128 * kp))
            d = k('buffer_load_dwordx4 v%d, %s, s%d offen offset:%d lds' % (60 + o, SX_, soff, 128 * kp))
        out.append(d)
    return out


def raw_read(k, kp):
    for kap in range(2):
        r = k('ds_read_b128 %s, v%d offset:%d' % (ar(4 * (2 * kp + kap), 4), 26 + kap, 2048 * kp))
    return r


def raw_addr(k):
    k('''v_lshrrev_b32 v26, 1, v2
    v_xor_b32 v26, v3, v26
    v_lshlrev_b32 v26, 4, v26
    v_lshl_add_u32 v26, v2, 7, v26
    v_add_u32 v26, s39, v26
    v_xor_b32 v27, 64, v26''')


def a_trig(k):
    T = 232
    k('''v_lshl_add_u32 v{t}, s20, 4, v2
    v_cvt_f32_u32 v{t}, v{t}
    v_lshl_add_u32 v{t1}, v3, 8, s34
    v_xor_b32 v{t2}, 32, v{t1}
    v_cvt_f32_u32 v{t1}, v{t1}
    v_cvt_f32_u32 v{t2}, v{t2}
    v_mul_f32 v{t}, 0x3a000000, v{t}
    v_and_b32 v{t3}, 1, v2
    v_mul_u32_u24 v{t3}, 0x8000, v{t3}
    v_lshl_or_b32 v{t3}, v{t3}, 16, v{t3}'''.format(t=T, t1=T + 1, t2=T + 2, t3=T + 3))
    for bo in range(2):
        b = TRG + 12 * bo
        k('v_mul_f32 v%d, v%d, v%d' % (T + 4, T, T + 1 + bo))
        for r in range(1, 4):
            k('v_fmamk_f32 v%d, v%d, %s, v%d' % (T + 4 + r, T, f2h(64.0 * r), T + 4))
        for r in range(4):
            k('v_fract_f32 v%d, v%d' % (T + 4 + r, T + 4 + r))
        for r in range(4):
            k('v_sin_f32 v%d, v%d' % (T + 8 + r, T + 4 + r))
            k('v_cos_f32 v%d, v%d' % (T + 4 + r, T + 4 + r))
        for p in range(2):
            k('v_cvt_pk_bf16_f32 v%d, v%d, v%d' % (b + 4 + p, T + 8 + 2 * p, T + 9 + 2 * p))
            k('v_cvt_pk_bf16_f32 v%d, v%d, v%d' % (b + 2 + p, T + 4 + 2 * p, T + 5 + 2 * p))
        for p in range(2):
            k('v_xor_b32 v%d, 0x80008000, v%d' % (b + p, b + 4 + p))
        for p in range(6):
            k('v_xor_b32 v%d, v%d, v%d' % (b + 6 + p, T + 3, b + p))


def btrg(kind, h, ks):
    return BTR + ((kind * 2 + h) * 2 + ks) * 4


def b_trig(k):
    T = ACC
    k('''v_cvt_f32_u32 v%d, v2
    v_add_u32 v%d, s30, v2
    v_and_b32 v%d, 1, v3
    v_and_b32 v%d, 1, v2
    v_and_b32 v%d, 1, v%d
    v_cvt_f32_u32 v%d, v%d
    v_cvt_f32_u32 v%d, v3
    s_mov_b32 s35, 0x80008000
    v_mul_lo_u32 v%d, v%d, s35
    v_mul_lo_u32 v%d, v%d, s35
    v_mul_lo_u32 v%d, v%d, s35
    v_mul_f32 v%d, 0x3d000000, v%d
    v_mul_f32 v%d, 0xbd000000, v%d
    v_add_f32 v%d, 4.0, v%d
    v_add_f32 v%d, 4.0, v%d
    v_add_f32 v%d, 4.0, v%d''' % (T, T + 1, T + 2, T + 3, T + 4, T + 1, T + 1, T + 1, T + 8,
                                 T + 2, T + 2, T + 3, T + 3, T + 4, T + 4, T, T, T + 1, T + 1,
                                 T + 9, T + 8, T + 10, T + 9, T + 11, T + 10))
    for kind in range(2):
        for i in range(4):
            k('v_mul_f32 v%d, v%d, v%d' % (T + 12 + i, T + kind, T + 8 + i))
        for i in range(4):
            k('v_fract_f32 v%d, v%d' % (T + 12 + i, T + 12 + i))
        for i in range(4):
            k('v_sin_f32 v%d, v%d' % (T + 16 + i, T + 12 + i))
            k('v_cos_f32 v%d, v%d' % (T + 12 + i, T + 12 + i))
        for i in range(4):
            k('v_cvt_pk_bf16_f32 v%d, v%d, v%d' % (btrg(kind, 0, 0) + i, T + 12 + i, T + 16 + i))
        for i in range(4):
            k('v_xor_b32 v%d, v%d, v%d' % (btrg(kind, 0, 1) + i, T + 3 + kind, btrg(kind, 0, 0) + i))
        for i in range(8):
            k('v_xor_b32 v%d, v%d, v%d' % (btrg(kind, 1, 0) + i, T + 2, btrg(kind, 0, 0) + i))


def consts_a(k):
    k('''s_bfe_u32 s21, s2, 0x20001
    s_lshl_b32 s21, s21, 3
    s_bfe_u32 s35, s2, 0x30003
    s_add_u32 s21, s21, s35
    s_sub_u32 s26, 64, s21
    s_xor_b32 s28, s23, 1
    s_cmp_eq_u32 s21, 0
    s_cselect_b32 s26, 32, s26
    s_cselect_b32 s28, s23, s28
    s_cmp_eq_u32 s23, 0
    s_cselect_b32 s27, s21, s26
    s_mul_i32 s37, s20, %d
    s_lshl_b32 s35, s33, 12
    s_add_u32 s37, s37, s35
    s_lshl_b32 s35, s32, 6
    s_add_u32 s37, s37, s35
    s_add_u32 s37, s37, 0x%x
    s_lshl_b32 s1, s24, 10
    s_add_u32 s1, s1, s27
    s_mul_i32 s1, s1, 896
    s_mov_b32 s100, 128
    s_mov_b32 s101, 0
    s_mov_b32 s3, 0
    s_lshl_b32 s35, s20, 11
    s_add_u32 s35, s35, %d
    v_add_u32 v%d, s35, v%d
    v_xor_b32 v%d, 2048, v%d''' % (16 * 28672, Z1, L_SX, SXW, L16, SXP, SXW))


def consts_b(k):
    k('''s_and_b32 s22, s2, 1
    s_lshl_b32 s22, s22, 2
    s_lshr_b32 s35, s2, 6
    s_add_u32 s22, s22, s35
    s_cmp_eq_u32 s28, 0
    s_cselect_b32 s30, s21, s26
    s_min_u32 s30, s30, 1
    s_mul_i32 s31, s24, 7
    s_mul_i32 s36, s27, 14
    s_add_u32 s36, s36, s31
    s_lshl_b32 s36, s36, 11
    s_add_u32 s36, s36, 0x%x
    s_mul_i32 s35, s22, 14
    s_add_u32 s38, s35, s23
    s_mul_i32 s38, s38, 28672
    s_lshl_b32 s34, s24, 10
    s_add_u32 s38, s38, s34
    s_add_u32 s40, s35, s20
    s_add_u32 s40, s40, 2
    s_mul_i32 s40, s40, 28672
    s_lshl_b32 s41, s22, 2
    s_add_u32 s41, s41, s20
    s_mul_i32 s41, s41, 57344
    s_add_u32 s41, s41, 0x%x
    s_mul_i32 s42, s2, 28672
    s_add_u32 s42, s42, 0x%x
    s_and_b32 s43, s2, 0x3e
    s_lshl_b32 s35, s24, 7
    s_add_u32 s43, s43, s35
    s_add_u32 s43, s43, s23
    s_mul_i32 s43, s43, 28672
    s_add_u32 s43, s43, 0x%x
    s_lshl_b32 s62, s20, 10
    s_xor_b32 s17, s62, 1024
    s_xor_b32 s18, s62, 2048
    s_xor_b32 s19, s62, 3072
    s_add_u32 s16, s62, s43
    s_add_u32 s17, s17, s43
    s_add_u32 s18, s18, s43
    s_add_u32 s19, s19, s43
    s_add_u32 s62, s62, %d
    s_mov_b32 s50, 0
    s_mul_i32 s51, s24, 0xffff0000
    s_sub_u32 s52, 0, s24
    s_mov_b32 s53, s52''' % (Z1, W2P, HG1, HG1, L_WT))
    k('''v_lshlrev_b32 v{ZR}, 2, v1
    v_add_u32 v{ZR}, s39, v{ZR}
    v_lshrrev_b32 v28, 1, v3
    v_and_b32 v29, 1, v3
    v_lshlrev_b32 v30, 4, v2
    v_lshl_add_u32 v30, v28, 8, v30
    v_lshl_add_u32 v30, v29, 3, v30
    s_mul_i32 s35, s23, 28672
    s_lshl_b32 s34, s31, 9
    s_add_u32 s35, s35, s34
    v_add_u32 v{AD1}, s35, v30
    v_xor_b32 v30, 0x108, v30
    s_mul_i32 s35, s28, 28672
    s_add_u32 s35, s35, {c42}
    s_sub_u32 s35, s35, s34
    v_add_u32 v{AM}, s35, v30
    s_mul_i32 s35, s24, 28672
    v_add_u32 v{VO}, s35, v{L16}
    s_sub_u32 s35, 28672, s35
    v_add_u32 v{VT}, s35, v{L16}
    v_lshl_add_u32 v{HT}, v28, 9, v{L16}
    s_lshl_b32 s34, s24, 11
    s_lshl_b32 s35, s23, 9
    s_add_u32 s35, s35, s34
    s_add_u32 s35, s35, 24576
    v_add_u32 v{HS}, s35, v{HT}
    s_mul_i32 s34, s24, 2560
    s_lshl_b32 s35, s23, 12
    s_add_u32 s35, s35, s34
    v_add_u32 v{HO}, s35, v{HT}
    v_xor_b32 v{HT}, 2048, v{HO}
    v_mov_b32 v30, s23
    v_mov_b32 v31, s28
    v_cmp_eq_u32 vcc, 0, v28
    v_cndmask_b32 v30, v31, v30, vcc
    v_lshl_add_u32 v30, v30, 1, v29
    v_lshl_add_u32 v30, v30, 4, v2
    v_lshlrev_b32 v{STR}, 5, v30
    v_add_u32 v{STR}, {LST}, v{STR}
    v_lshl_add_u32 v{STW}, v28, 4, v{STR}
    s_lshl_b32 s35, s24, 3
    v_add_u32 v{STW}, s35, v{STW}
    v_lshlrev_b32 v{FINW}, 3, v30
    v_add_u32 v{FINW}, {LFIN}, v{FINW}
    v_lshlrev_b32 v0, 6, v0'''.format(ZR=ZR, AD1=AD1, AM=AM, VO=VO, VT=VT, HS=HS, HO=HO, HT=HT, STR=STR, STW=STW, FINW=FINW,
                                 L16=L16, c42=42 * 256, LH=L_H, LST=L_ST, LFIN=L_FIN))
    k('''s_mul_i32 s56, s22, 1792
    s_lshl_b32 s29, s27, 1
    s_add_u32 s29, s29, s24
    s_mul_i32 s29, s29, 14336
    s_add_u32 s29, s29, 0x%x
    s_add_u32 s55, s29, s56
    s_mov_b32 s61, 16
    s_mov_b32 s63, 256
    s_add_u32 s56, s56, s39
    s_mov_b32 s59, 0x05040c0c
    s_cmp_lt_u32 s22, 4
    s_cselect_b32 s57, -242, 0
    s_cselect_b32 s60, 0x03020c0c, s59
    s_cselect_b32 s59, s59, 0x07060c0c
    s_cmp_eq_u32 s22, 4
    s_cselect_b32 s58, -242, s57
    s_cmp_eq_u32 s22, 0
    s_cselect_b32 s58, 7168, s58
    s_sub_u32 s69, s57, s58
    s_add_u32 s57, s57, 1024
    s_mov_b32 s54, %s''' % (X2, f2h(LOG2E * LOG2E)))
    k('s_bfe_u32 s35, s2, 0x30003\ns_lshl_b32 s35, s35, 1\ns_lshr_b32 s35, 0x%x, s35\ns_and_b32 s35, s35, 3' % (0x4924 if OPT['rot'] else 0))
    for p in (1, 2, 0):
        k("""s_add_u32 s35, s35, 1
        s_cmp_eq_u32 s35, 3
        s_cselect_b32 s35, 0, s35
        s_mul_i32 s34, s35, 114688
        s_add_u32 s%d, s40, s34
        s_lshl_b32 s34, s35, 14
        s_add_u32 s%d, s41, s34""" % ((40, 21, 25)[p], (26, 31, 33)[p]))
    if OPT['stamps']:
        k('v_mov_b32 v%d, 0\ns_mov_b32 s45, 0' % STV)


def w2_decode(k, r, src, dst):
    k("""s_lshr_b32 s25, s{r}, 3
    s_and_b32 s{r}, s{r}, 7
    s_mul_i32 s{src}, s25, 28672
    s_mul_i32 s35, s{r}, 112
    s_add_u32 s{src}, s{src}, s35
    s_mul_i32 s35, s25, 9363
    s_lshr_b32 s35, s35, 16
    s_mul_i32 s34, s35, 7
    s_sub_u32 s34, s25, s34
    s_cmp_eq_u32 s34, 0
    s_cselect_b32 s34, 7, s34
    s_sub_u32 s34, s34, 1
    s_lshl_b32 s34, s34, 1
    s_and_b32 s25, s35, 1
    s_add_u32 s34, s34, s25
    s_lshr_b32 s35, s35, 1
    s_lshl_b32 s{r}, s{r}, 2
    s_add_u32 s35, s35, s{r}
    s_mul_i32 s35, s35, 14
    s_add_u32 s35, s35, s34
    s_lshl_b32 s35, s35, 12
    s_add_u32 s{dst}, s35, 0x{w2p:x}""".format(r=r, src=src, dst=dst, w2p=W2P))


def tr_addr(k, d, base, hi, odd):
    k("""v_bfe_u32 v{d}, v1, 2, 2
    v_lshl_add_u32 v{d}, v3, 3, v{d}
    v_lshlrev_b32 v{d}, 3, v{d}
    v_and_b32 v{e}, 1, v1
    v_add_u32 v{d}, v{d}, v{e}
    v_lshl_add_u32 v{d}, v{d}, 4, s{b}
    v_bfe_u32 v{e}, v1, 1, 1
    v_mad_u32_u24 v{d}, v{e}, {hi}, v{d}
    v_add_u32 v{e}, {odd}, v{d}""".format(d=d, e=d + 1, b=base, hi=hi, odd=odd))


def tr_read(k, d, adr, off):
    for t in range(4):
        for hh in range(2):
            k('ds_read_b64_tr_b16 %s, v%d offset:%d' % (vr(d + 4 * t + 2 * hh, 2), adr + (t & 1), off + 512 * hh + 64 * (t >> 1)))


def poison(k, lo, hi, d, t):
    lst = [(HG1, 7168, 1024 * x) for x in range(7)] + [(Z2, 3584, x) for x in (0, 1024, 2048, 2560)]
    cur = None
    if lo < hi:
        for x in range(4):
            k('v_mov_b32 v%d, -1' % (d + x))
    for b, st, off in lst[max(lo, OPT['skip']):hi]:
        if cur is None or cur[0] != st:
            k('s_lshl_b32 s{t}, s2, 2\ns_add_u32 s{t}, s{t}, s20\ns_mul_i32 s{t}, s{t}, {st}'.format(t=t, st=st))
            cur = (st, 0)
        w = b + (off & ~4095)
        if w != cur[1]:
            k('s_add_u32 s%d, s%d, 0x%x' % (t, t, w - cur[1]))
            cur = (st, w)
        k('buffer_store_dword%s %s, v%d, %s, s%d offen offset:%d %s' % ('' if OPT['pd'] else 'x4', vr(d, 1 if OPT['pd'] else 4), L16, WS, t, off & 4095, ('sc1', 'sc0 sc1', 'sc1 nt', 'sc0 sc1 nt')[OPT['pm']]))


SUM, SQ, SV = ACC, ACC + 4, ACC + 8


def gather(k):
    k('''v_and_b32 v30, 1, v3
    v_mul_u32_u24 v30, 240, v30
    v_add3_u32 v30, v30, v%d, 8
    s_mul_i32 s35, s28, 28672
    v_lshl_add_u32 v31, v2, 4, s35''' % AD1)
    rdq = []
    for u in range(7):
        for h in range(2):
            b = BIG + 16 * u + 4 * h
            k('ds_read_b64 %s, v%d offset:%d' % (vr(b, 2), AD1, 512 * u + 14336 * h))
            k('ds_read_b32 v%d, v30 offset:%d' % (b + 3, 512 * u + 14336 * h))
            k('ds_read_b64 %s, v%d offset:%d' % (vr(b + 10, 2), AM, 512 * (6 - u) + 14336 * h))
        if u == 6:
            for h in range(2):
                k('ds_read_b32 v%d, v31 offset:%d' % (SV + h, 14336 * h))
        for uu in ([u - 2] if u < 6 else [4, 5, 6]):
            if uu < 0:
                continue
            lo = lambda d, x: k('v_lshlrev_b32 v%d, 16, v%d' % (d, x))
            hi = lambda d, x: k('v_and_b32 v%d, 0xffff0000, v%d' % (d, x))
            for h in range(2):
                b = BIG + 16 * uu + 4 * h
                hi(b + 2, b + 1); lo(b + 1, b + 1); hi(b, b); lo(b + 3, b + 3)
                b += 8
                hi(b, b + 3); lo(b + 1, b + 3); lo(b + 3, b + 2); hi(b + 2, b + 2)
    for h in range(2):
        k('v_lshlrev_b32 v%d, 16, v%d' % (SV + h, SV + h))


def gen():
    k = S()
    k('.p2align 8\n.globl %s_kernel\n.type %s_kernel,@function\n%s_kernel:' % (NAME, NAME, NAME))
    stamp(k, 0)
    k("""s_load_dwordx2 s[4:5], s[0:1], 0
    s_load_dwordx8 s[56:63], s[0:1], 48
    s_load_dwordx4 s[64:67], s[0:1], 80
    s_cmp_ge_u32 s2, 256
    s_cbranch_scc1 k_end
    v_lshrrev_b32 v2, 6, v0
    v_and_b32 v1, 63, v0
    v_readfirstlane_b32 s20, v2
    v_lshrrev_b32 v3, 4, v1
    v_lshrrev_b32 v62, 3, v1
    v_and_b32 v63, 7, v1
    v_xor_b32 v60, v63, v3
    v_lshlrev_b32 v60, 4, v60
    s_mov_b32 s35, 57344
    v_mad_u32_u24 v60, v62, s35, v60
    v_xor_b32 v61, 64, v60
    v_add_u32 v61, 0x70000, v61
    s_and_b32 s32, s2, 7
    s_lshl_b32 s32, s32, 2
    s_bfe_u32 s35, s2, 0x20003
    s_add_u32 s32, s32, s35
    s_lshr_b32 s33, s2, 5
    s_lshr_b32 s23, s20, 1
    s_and_b32 s24, s20, 1
    s_mul_i32 s39, s20, 14336
    s_mov_b32 s6, 0x%x
    s_mov_b32 s7, 0x00020000
    s_cmp_ge_u32 s2, 224
    s_cbranch_scc1 k_idle1""" % XBYTES)
    rest = """v_lshlrev_b32 v63, 4, v63
    v_and_b32 v2, 15, v1
    v_lshlrev_b32 v%d, 4, v1
    s_mov_b32 s19, 0x00020000""" % L16
    PW = 64
    k("""s_lshl_b32 s43, s23, 5
    s_lshl_b32 s35, s24, 10
    s_add_u32 s43, s43, s35
    s_add_u32 s43, s43, s32
    s_mul_i32 s43, s43, 896
    s_mov_b32 s40, s33""")
    k0, k = k, S()
    k(rest)
    k("""s_lshl_b32 s45, s2, 2
    s_add_u32 s45, s45, s20
    s_mul_i32 s44, s20, 7168
    s_add_u32 s44, s44, %d
    s_mov_b32 s18, %d
    s_cmp_ge_u32 s2, 196
    s_cbranch_scc1 k_u2
    s_lshr_b32 s22, s45, 1
    s_mul_i32 s25, s22, 2341
    s_lshr_b32 s25, s25, 16
    s_mul_i32 s35, s25, 28
    s_sub_u32 s22, s22, s35
    s_lshl_b32 s46, s25, 5
    s_cmp_lt_u32 s25, 7
    s_addc_u32 s46, s46, 0
    s_mul_i32 s46, s46, 3584
    s_lshl_b32 s35, s22, 7
    s_add_u32 s46, s46, s35
    s_mul_i32 s47, s22, 56
    s_add_u32 s47, s47, s25
    s_lshl_b32 s47, s47, 1
    s_add_u32 s47, s47, s24
    s_lshl_b32 s47, s47, 10
    s_mov_b32 s48, 28672
    s_mov_b32 s49, 3584
    s_cmp_eq_u32 s25, 7
    s_cselect_b32 s21, %d, 0
    s_mov_b32 s52, 8
    s_mov_b32 s53, 32
    s_branch k_u3
    k_u2:
    s_sub_u32 s22, s45, 784""" % (L_H, 448 * 3584, 224 * 3584))
    w2_decode(k, 22, 46, 47)
    k("""s_mov_b32 s48, 1024
    s_mov_b32 s49, 896
    s_mov_b32 s21, 0
    s_mov_b32 s52, 32
    s_mov_b32 s53, 8
    k_u3:
    v_mad_u32_u24 v63, v62, s49, v63
    v_add_u32 v63, s46, v63
    v_cmp_eq_u32 vcc, 0, v62
    v_mov_b32 v62, s21
    v_cndmask_b32 v62, 0, v62, vcc
    v_sub_u32 v62, v63, v62
    s_lshl_b32 s49, s49, 3""")
    srd(k, 8, 66, WSN)
    srd(k, 12, 62, XBYTES)
    srd(k, 64, 64, 256)
    dec, k = k, k0
    fw, fx, fp = S(), S(), S()
    fw("""s_cmp_eq_u32 s24, 0
    s_cselect_b32 s16, s56, s58
    s_cselect_b32 s17, s57, s59
    s_cmp_ge_u32 s2, 196
    s_cselect_b32 s16, s60, s16
    s_cselect_b32 s17, s61, s17""")
    for n in range(4):
        fw('s_add_u32 m0, s44, %d' % (1024 * n))
        if n > 1:
            fw('s_mul_i32 s46, s49, %d' % n)
        wd = fw('buffer_load_dwordx4 v%d, %s, %s offen lds' % (63 if n else 62, SW, ('0', 's49', 's46', 's46')[n]))
    stamp(fw, 12, 3)
    for kp in range(7):
        if kp:
            fx("""s_add_u32 s40, s40, 1
            s_cmp_eq_u32 s40, 7
            s_cselect_b32 s40, 0, s40""")
        fx("""s_lshl_b32 s42, s40, 11
        s_add_u32 m0, s42, s39
        s_lshl_b32 s41, s40, 7
        s_add_u32 s41, s41, s43""")
        fx('buffer_load_dwordx4 v60, %s, s41 offen lds' % SX_)
        fx('s_add_u32 m0, m0, 1024')
        xl = fx('buffer_load_dwordx4 v61, %s, s41 offen lds' % SX_)
    stamp(fx, 13, 3)
    if OPT['tt']:
        sel, fw = S(fw[:6]), S(fw[6:])
        sel('v_mov_b32 v53, s46\nbuffer_load_dword v53, v53, %s, 0 offen' % SW)
        if OPT['tt'] == 1:
            fx.extend(sel)
        else:
            dec.extend(sel)
    if OPT['wn']:
        j = [i for i, x in enumerate(fw) if x.cls == 'dma'][OPT['wn'] - 1] + 1
        fx.extend(fw[:j])
        fw = S(fw[j:])
    if OPT['ord'] == 1:
        fx.extend(fw)
    m = S()
    T = BIG
    m("""s_lshl_b32 s35, s33, 5
    s_lshl_b32 s34, s24, 4
    s_add_u32 s35, s35, s34
    s_add_u32 s35, s35, 1
    v_add_u32 v28, s35, v2
    v_and_b32 v31, 1, v28
    v_cvt_f32_u32 v28, v28
    v_mul_u32_u24 v31, 0x8000, v31
    v_mul_f32 v28, %s, v28
    v_lshl_or_b32 v31, v31, 16, v31
    s_lshl_b32 s35, s23, 7
    v_lshl_add_u32 v29, v3, 3, s35
    v_cvt_f32_u32 v29, v29
    v_mul_f32 v29, v28, v29
    s_mul_i32 s35, s24, 28672
    s_lshl_b32 s34, s23, 12
    s_add_u32 s35, s35, s34
    s_add_u32 s35, s35, %d
    v_add_u32 v30, s35, v%d""" % (f2h(-1 / 448), L_WT, L16))
    for kk in range(4):
        B = T + 32 * (kk & 1)
        n = 8 if kk < 3 else 4
        if kk == 3:
            m('s_mul_i32 s35, s23, %s\ns_mul_i32 s34, s23, 4088\nv_fma_f32 v29, v28, s35, v29\nv_subrev_u32 v30, s34, v30' % f2h(-124.0))
        for el in range(n):
            m('v_fmamk_f32 v%d, v28, %s, v29' % (B + el, f2h(32.0 * kk + el)))
        for el in range(n):
            m('v_sin_f32 v%d, v%d' % (B + n + el, B + el))
            m('v_cos_f32 v%d, v%d' % (B + el, B + el))
        for x in range(n):
            m('v_cvt_pk_bf16_f32 v%d, v%d, v%d' % (B + 16 + x, B + 2 * x, B + 2 * x + 1))
        for x in range(n):
            m('v_xor_b32 v%d, v31, v%d' % (B + 24 + x, B + 16 + x))
        for fl in range(2):
            for p in range(2):
                m('ds_write_b%d v30, %s offset:%d' % (16 * n, vr(B + 16 + 8 * fl + n // 2 * p, n // 2), 14336 * p + 1024 * kk + 7168 * fl))
    tr_addr(m, 88, 44, 's52', 's53')
    raw_addr(m)
    i0 = [i for i, x in enumerate(fx) if x.cls == 'dma'][OPT['f0'] - 1] + 1
    k.extend(fx[:4])
    k('s_waitcnt lgkmcnt(0)')
    stamp(k, 8, 3)
    k.extend(fx[4:i0])
    stamp(k, 10, 3)
    k.extend(dec)
    pz = S()
    poison(pz, 0, OPT['nf'], 52, 50)
    m = weave(m, S(fx[i0:]), only=('valu',), every=OPT['ev'], start=OPT['ws0'])
    k.extend(pz[:4])
    m = weave(m, S(pz[4:]), only=('valu',), every=OPT['pev'], start=OPT['pw0'])
    if OPT['rep']:
        print('front valu', sum(x.cls == 'valu' for x in m), [(x.cls, sum(y.cls == 'valu' for y in m[:j])) for j, x in enumerate(m) if x.cls in VM])
    k.extend(m)
    stamp(k, 1)

    def w_out(k):
        for t in range(4):
            k('buffer_store_dwordx4 %s, v%d, %s, s47 offen sc1' % (vr(PW + 4 * t, 4), L16, WS)).opt = True
            if t < 3:
                k('s_add_u32 s47, s47, s48')
    consts_a(k)
    if OPT['ord'] == 2:
        k.extend(fw)
    stamp(k, 9, 3)
    k.wait(xl)
    stamp(k, 11, 3)
    for kp in range(7):
        raw_read(k, kp)
    if not OPT['ord']:
        k.extend(fw)
    k.extend(fp)
    stamp(k, 2, 3)
    k('s_waitcnt lgkmcnt(0)\ns_barrier')
    k0, k = k, S()

    k('k_idle1:')
    k.reset()
    k(rest)
    if OPT['cpf']:
        k("""s_getpc_b64 s[26:27]
        k_pc:
        s_bfe_u32 s21, s2, 0x20003
        s_lshl_b32 s21, s21, 2
        s_add_u32 s21, s21, s20
        s_lshl_b32 s21, s21, 12
        v_lshl_add_u32 v40, v1, 6, s21
        v_min_u32 v40, k_last - %s_kernel, v40
        s_sub_u32 s26, s26, k_pc - %s_kernel
        s_subb_u32 s27, s27, 0
        global_load_dword v50, v40, s[26:27]""" % (NAME, NAME))
    k("""s_sub_u32 s21, s2, 224
    s_lshl_b32 s21, s21, 2
    s_add_u32 s21, s21, s20
    s_cmp_eq_u32 s21, 127
    s_cselect_b32 s22, 0, 0x%x
    v_mov_b32 v28, s22
    v_mov_b32 v36, 1
    v_mov_b32 v80, -1
    v_lshlrev_b32 v37, %d, v1
    v_add_u32 v37, s22, v37
    s_mov_b32 s49, 896
    v_mad_u32_u24 v63, v62, s49, v63
    s_add_u32 s55, s39, %d
    s_mov_b32 s18, %d""" % (OOB, OPT['fs'], L_WT, 1792 * 896))
    for n in range(3):
        k('s_add_u32 s22, s21, %d' % (112 + 128 * n))
        w2_decode(k, 22, 26 + n, 46 + n)
    k("""s_cmp_ge_u32 s21, 80
    s_cselect_b32 s28, 0x%x, s28
    s_cselect_b32 s48, 0x%x, s48
    s_waitcnt lgkmcnt(0)
    s_mov_b32 s16, s60
    s_mov_b32 s17, s61""" % (OOB, OOB))
    stamp(k, 8, 3)
    srd(k, 8, 66, WSN)
    srd(k, 12, 62, XBYTES)
    srd(k, 64, 64, 256)
    for x in range(4):
        zs = k('s_mov_b32 s35, 0x%x\nbuffer_store_dword v80, v37, %s, s35 offen sc1' % (FLG + (64 * x << OPT['fs']), WS))
    wd = []
    for n in range(3):
        k('v_add_u32 v%d, s%d, v63' % (40 + n, 26 + n))
        for z in range(4):
            k('s_add_u32 m0, s55, %d' % (4096 * n + 1024 * z))
            k('s_mov_b32 s35, %d' % (7168 * z))
            d = k('buffer_load_dwordx4 v%d, %s, s35 offen lds' % (40 + n, SW))
        wd.append(d)
    stamp(k, 9, 3)
    k.wait(zs)
    k('buffer_store_dword v36, v28, %s, 0 offen sc1' % SD)
    stamp(k, 1)
    tr_addr(k, 44, 55, 32, 8)
    consts_a(k)
    raw_dma(k, 1)
    poison(k, 0, OPT['nf'], 52, 50)
    stamp(k, 2, 3)
    for n in range(3):
        k('v_add_u32 v%d, s%d, v%d' % (40 + n, 46 + n, L16))
        k.wait(wd[n])
        tr_read(k, BIG + 16 * n, 44, 4096 * n)
    for n in range(3):
        for t in range(4):
            k('buffer_store_dwordx4 %s, v%d, %s, 0 offen offset:%d sc1' % (vr(BIG + 16 * n + 4 * t, 4), 40 + n, WS, 1024 * t))
    stamp(k, 10, 3)
    k('s_branch k_l1i')

    kidle, k = k, S()
    k('k_l2:')
    k("""s_lshl_b32 s0, s23, 5
    s_add_u32 s0, s0, s32
    s_lshl_b32 s0, s0, 1
    s_add_u32 s0, s0, s24
    s_mul_i32 s0, s0, 14336
    s_add_u32 s0, s0, 0x%x
    s_cmp_ge_u32 s2, 224
    s_cselect_b32 s0, s29, s0
    s_mov_b32 s1, s29
    v_mov_b32 v60, v%d
    v_add_u32 v61, 1024, v%d
    v_lshlrev_b32 v28, 7, v1
    v_add_u32 v29, 6144, v28""" % (X2, L16, L16))
    spin(k, 'k_pr', 'buffer_load_dword v30, v28, %s, s0 offen sc1\nbuffer_load_dword v31, v29, %s, s0 offen sc1' % (WS, WS),
         'v_max_u32 v30, v30, v31\nv_cmp_eq_u32 vcc, -1, v30')
    stamp(k, 0)
    k('s_cmp_ge_u32 s2, 224\ns_cbranch_scc1 k_res')
    xl2 = []
    for ks in range(14):
        if ks and ks % 4 == 0:
            k('s_add_u32 s0, s0, 4096')
        xl2.append(k('buffer_load_dwordx4 %s, v%d, %s, s0 offen offset:%d sc1' % (ar(4 * ks, 4), L16, WS, 1024 * (ks & 3))))
    R1, RP, NT, NB = OPT['r1'], OPT['rp'], OPT['nt'], OPT['nb']
    PF = RING if OPT['nr2'] else 48
    assert RP + NT + R1 <= PF and RP >= 16
    stamp(k, 1)
    k('s_branch k_kloop')
    kl2, k = k, k0

    k('k_kloop:')
    k.append(Seed(xl2))
    k('v_add_u32 v%d, %d, v%d' % (WR, L_WT, L16))
    T0, G0, S0, ONES, ZA = 32, 48, 52, 56, 232

    def wf(ks, t):
        return vr(BIG + 4 * ((4 * ks + t) % 28), 4)

    def wread(s, ks, t):
        return s('ds_read_b128 %s, v%d offset:%d' % (wf(ks, t), WR, 14336 * t + 1024 * ks))
    NP0 = OPT['np0']
    for n in range(NP0):
        wread(k, n // 4, n % 4)
    for i in range(4):
        k('v_mov_b32 v%d, 0x3f803f80' % (ONES + i))
    k("""s_lshl_b32 s34, s23, 5
    s_add_u32 s34, s34, s32
    s_lshl_b32 s35, s24, 10
    s_add_u32 s34, s34, s35
    s_mov_b32 s35, %s
    s_mov_b32 s68, 28672""" % f2h(1 / 448))
    stamp(k, 3)
    q0, q3, q4, f = Q(), Q(), Q(), S()
    for n in range(NP0, 28):
        wread(f, n // 4, n % 4)
    q0.add(f, 0)
    f = S()
    f('v_mov_b32 v28, %s\nv_mul_u32_u24 v%d, 80, v3' % (f2h(1e-5), BP))
    if OPT['zexp']:
        f('v_and_b32 v30, 8, v2\nv_lshlrev_b32 v30, 3, v30\nv_lshl_add_u32 v30, v3, 4, v30\nv_lshl_add_u32 v30, s32, 6, v30\nv_and_b32 v29, 7, v2\nv_mad_u32_u24 v%d, v29, s68, v30' % ZO)
        f('v_add_u32 v251, %d, v%d' % (8 * 28672 - 2048, ZO))
    else:
        f('v_lshlrev_b32 v30, 4, v3\nv_mad_u32_u24 v%d, v2, s68, v30' % ZO)
    f('v_xor_b32 v29, 4096, v%d\nv_xor_b32 v30, 4096, v%d' % (SXW, SXP))
    a_trig(f)
    q4.add(f, 0)
    f = S()
    for n in range(14):
        f('s_add_u32 m0, s39, %d' % (1024 * n))
        if n and n & 1 == 0:
            f('s_add_u32 s1, s1, s100')
        f('buffer_load_dwordx4 v%d, %s, s1 offen sc1 lds' % (60 + (n & 1), SX_))
    q3.add(f, OPT['kd'], OPT['ks'])
    LAG = 4
    mf, q1, q2 = S(), Q(), Q()
    for st in range(14 + LAG):
        if st < 14:
            x = ar(4 * st, 4)
            mf('%s %s, %s, %s, %s' % (MF, vr(G0, 4), x, x, vr(G0, 4) if st else '0'))
            mf('%s %s, %s, %s, %s' % (MF, vr(S0, 4), x, vr(ONES, 4), vr(S0, 4) if st else '0'))
            if st == 13:
                f = S()
                for r in range(4):
                    f('ds_bpermute_b32 v%d, v%d, v%d offset:%d' % (TMP + r, BP, G0 + r, 4 * r))
                for r in range(4):
                    f('v_mul_f32 v%d, s35, v%d' % (S0 + r, S0 + r))
                for r in range(4):
                    f('v_fma_f32 v%d, -v%d, v%d, v28' % (S0 + r, S0 + r, S0 + r))
                q2.add(f, len(mf) + 1)
                f = S()
                for r in range(4):
                    f('v_fma_f32 v%d, v%d, s35, v%d' % (TMP + r, TMP + r, S0 + r))
                for r in range(4):
                    f('v_rsq_f32 v%d, v%d' % (TMP + r, TMP + r))
                f('v_add_f32 v62, v%d, v%d\nv_add_f32 v63, v%d, v%d\nv_cmp_u_f32 vcc, v62, v63' % (TMP, TMP + 1, TMP + 2, TMP + 3))
                q2.add(f, len(mf) + 10)
        ks = st - LAG
        if ks >= 0:
            for t in range(4):
                d = vr(T0 + 4 * t, 4)
                mf('%s %s, %s, %s, %s' % (MF, d, ar(4 * ks, 4), wf(ks, t), d if ks else '0'))
                if ks < 7:
                    f = S()
                    wread(f, ks + 7, t)
                    q1.add(f, len(mf) - 1)
    o, left = sched(mf, [q2, q0, q1, q3, q4])
    g10 = [j for j, x in enumerate(o) if x.cls == 'mfma'][8 + 6 * 6]
    assert not any(x.cls == 'dma' for x in o[:g10])
    o[g10:g10] = [Ins('s_cmp_eq_u32 s3, 0'), Ins('s_cbranch_scc1 k_x10'), Ins('s_waitcnt vmcnt(0)'), Ins('k_x10:')]
    k.extend(o)
    id4 = {id(x) for e, x in q4.items}
    k.extend(x for x in left if x.cls == 'valu' and id(x) not in id4)
    late = S(x for x in left if x.cls != 'valu')
    nd = 14 - sum(x.cls == 'dma' for x in late)
    if OPT['rep']:
        print('K loop left', len(left), 'dma in loop', nd)
    k('s_cbranch_vccnz k_xre\nk_xok:')
    if OPT['late'] == 1:
        k('s_cmp_lg_u32 s3, 0\ns_cbranch_scc1 k_w1\ns_waitcnt vmcnt(%d)' % nd)
        tr_read(k, PW, 88, 0)
        k('k_w1:')
    k1, k = k, S()
    stamp(k, 4)
    AF = BIG
    wr = []
    for nu in range(2):
        for p in range(2):
            t = T0 + 8 * nu + 4 * p
            for r in range(2):
                k('v_pk_mul_f32 %s, %s, %s' % (vr(t + 2 * r, 2), vr(t + 2 * r, 2), vr(TMP + 2 * r, 2)))
        for p in range(2):
            t = T0 + 8 * nu + 4 * p
            for r in range(2):
                k('v_cvt_pk_bf16_f32 v%d, v%d, v%d' % (AF + 4 * nu + 2 * p + r, t + 2 * r, t + 2 * r + 1))
        wr.append(k('ds_write_b128 v%d, %s offset:%d' % (SXW, vr(AF + 4 * nu, 4), 1024 * nu)))

    def st1(x):
        for nu in range(2):
            for z in range(2):
                d = vr(ZA + 8 * nu + 4 * z, 4)
                k('%s %s, %s, %s, %s' % (MF, d, vr(AF + 8 * x + 4 * nu, 4), vr(TRG + 6 * x + (2 if z == 0 else 0), 4), d if x else '0'))
    k.extend(x for x in left if id(x) in id4)
    k.wait(*wr)
    if OPT['late'] == 1:
        k('s_cmp_lg_u32 s3, 0\ns_cbranch_scc1 k_w2')
        w_out(k)
        k('k_w2:')
    k('s_barrier')
    for x in (1, 2, 3):
        for nu in range(2):
            k('ds_read_b128 %s, v%d offset:%d' % (vr(AF + 8 * x + 4 * nu, 4), (None, SXP, 29, 30)[x], 1024 * nu))
    for x in range(4):
        st1(x)
    k1.extend(weave(k, late, only=('valu', 'mfma'), every=OPT['kw']))
    k = k1
    for nu in range(2):
        for r in range(4):
            k('v_cvt_pk_bf16_f32 v%d, v%d, v%d' % (ACC + 20 + 4 * nu + r, ZA + 8 * nu + r, ZA + 8 * nu + 4 + r))
        k('buffer_store_dwordx4 %s, v%d, %s, s37 offen offset:%d sc1' % (vr(ACC + 20 + 4 * nu, 4), 251 if nu and OPT['zexp'] else ZO, WS, 2048 * nu))
    stamp(k, 5)
    k('s_cmp_eq_u32 s3, 0\ns_cbranch_scc1 k_l1t')
    k('k_a2t:')
    wl = WL()
    f = S()
    for n in range(RP + NT + R1, PF):
        wl(f, n)
    for n in range(154 - NB, 154):
        wl.dma(f, n)
    fv = [j for j, x in enumerate(f) if x.cls in VM]
    A0 = min(OPT['a0'], len(fv))
    j0 = fv[A0 - 1] + 1 if A0 else 0
    k.extend(f[:j0])
    k('v_add_u32 v28, s39, v%d\ns_waitcnt vmcnt(%d)' % (L16, A0 + 2))
    for n in range(14):
        k('ds_read_b32 v%d, v28 offset:%d' % (232 + n, 1024 * n))
    if not OPT['wa']:
        k.extend(f[j0:])
    for n in range(7):
        k('v_max3_u32 v232, v232, v%d, v%d' % (233 + 2 * n, min(245, 234 + 2 * n)))
    k("""v_cmp_eq_u32 vcc, -1, v232
    s_cbranch_vccnz k_rre
    k_join:
    s_barrier""")
    m = S()
    gather(m)
    k.extend(weave(m, S(f[j0:]), only=('valu', 'dsr'), every=OPT['wa']) if OPT['wa'] else m)
    stamp(k, 2 if OPT['stamps'] == 1 else 15)
    k('s_branch k_pg_go' if OPT['np2'] else 's_branch k_gp')
    k('k_l1t:')
    k.reset()
    if OPT['late'] == 2:
        k('s_waitcnt vmcnt(16)')
        tr_read(k, PW, 88, 0)
        w_out(k)
    k('k_l1i:')
    k('v_mov_b32 v28, 0\nbuffer_load_dword v63, v28, %s, 0 offen sc1' % SD)
    poison(k, OPT['nf'], OPT['nf'] + OPT['nz'], 56, 35)
    k("""s_lshl_b32 s34, s2, %d
    v_mov_b32 v53, s34
    v_mov_b32 v52, 0x%x
    v_cmp_eq_u32 vcc, 0, v0
    v_cndmask_b32 v%d, v52, v53, vcc
    s_lshl_b32 s34, s24, 7
    s_add_u32 s34, s34, s23
    s_lshl_b32 s34, s34, 6
    v_lshl_add_u32 v%d, v1, 7, s34
    v_mov_b32 v52, 1""" % (OPT['fs'], OOB, FV, PA))
    consts_b(k)
    NA = min(NPZ, OPT['nf'] + OPT['nz'] + OPT['na'])
    pz, m, cv = S(), S(), S()
    poison(pz, OPT['nf'] + OPT['nz'], NA, 56, 44)
    b_trig(m)
    raw_addr(m)
    for kp in range(7):
        raw_read(cv, kp)
    cv('v_add_u32 v28, s39, v%d\ns_waitcnt lgkmcnt(0)' % L16)
    for ks in range(14):
        cv('ds_write_b128 v28, %s offset:%d' % (ar(4 * ks, 4), 1024 * ks))
    if OPT['er']:
        k.extend(m)
        m = S()
    if OPT['er'] == 2:
        k('s_waitcnt vmcnt(%d)' % (3 + OPT['nz']))
        k.extend(cv)
    k("""s_mov_b32 s35, 0x%x
    s_waitcnt vmcnt(%d) lgkmcnt(0)
    v_cmp_eq_u32 vcc, 0, v63
    v_mov_b32 v28, 0
    s_nop 4
    s_cbranch_vccz k_flagA""" % (FLG, OPT['nz']))
    spin(k, 'k_pz', 'buffer_load_dword v63, v28, %s, 0 offen sc1' % SD, 'v_cmp_eq_u32 vcc, 0, v63')
    k('k_flagA:')
    k('s_barrier')
    k('buffer_store_dword v52, v%d, %s, s35 offen sc1' % (FV, WS))
    stamp(k, 6)
    if OPT['er'] < 2:
        m.extend(cv)
        m('s_waitcnt lgkmcnt(0)\ns_barrier')
    gather(m)
    k.extend(pz[:4])
    k.extend(weave(m, S(pz[4:]), only=('valu', 'dsr', 'dsw'), every=OPT['pa']))
    stamp(k, 2 if OPT['stamps'] == 1 else 15)
    k('k_gp:')
    GP = 44
    k("""s_cmp_eq_u32 s3, 0
    s_cselect_b32 s35, 0x{flg:x}, s36
    s_cselect_b32 s34, 0x{oob:x}, 0
    s_cselect_b32 s68, -1, 0xfc0
    v_mov_b32 v28, 0x{oob:x}
    v_and_b32 v{p}, s68, v0
    v_add_u32 v{p1}, s34, v{p}
    v_add_u32 v{p3}, 10240, v{p1}
    v_add_u32 v{p2}, 8192, v{p1}
    v_add_u32 v{p1}, 4096, v{p1}""".format(flg=FLG, oob=OOB, p=GP, p1=GP + 1, p2=GP + 2, p3=GP + 3))
    spin(k, 'k_pg', '\n'.join('buffer_load_dword v%d, v%d, %s, s35 offen sc1' % (GP + 4 + n, GP + n, WS) for n in range(4)),
         '\n'.join('v_cmp_eq_u32 vcc, -1, v%d\nv_cndmask_b32 v%d, v28, v%d, vcc' % (GP + 4 + n, GP + n, GP + n) for n in range(4)) +
         '\nv_max3_u32 v%d, v%d, v%d, v%d\nv_max_u32 v%d, v%d, v%d\nv_cmp_eq_u32 vcc, -1, v%d' % (GP + 4, GP + 4, GP + 5, GP + 6, GP + 4, GP + 4, GP + 7, GP + 4))
    k('s_barrier')
    stamp(k, 7)
    slow = S()

    def prologue(k):
        wl = WL()
        pl = []

        def wload(s, cnt=1):
            for _ in range(cnt):
                if len(pl) < RP:
                    pl.append(wl(s, len(pl)))
        dma = []
        for u in range(7):
            if u % 2 == 0:
                k('s_add_u32 m0, s39, %d\ns_add_u32 s35, s36, %d' % (2048 * u, 2048 * u))
            for ks in range(2):
                d = k('buffer_load_dwordx4 v%d, %s, s35 offen offset:%d sc1 lds' % (L16, WS, (u % 2) * 2048 + 1024 * ks))
            dma.append(d)
        tch = S()
        if OPT['tch']:
            tch("""s_cmp_lg_u32 s3, 0
            s_cbranch_scc1 k_tch
            s_lshl_b32 s35, s2, 7
            s_and_b32 s35, s35, 0x1c00
            v_and_b32 v234, 7, v1
            v_lshlrev_b32 v234, 7, v234
            v_lshrrev_b32 v233, 3, v1
            v_lshl_add_u32 v235, v233, 13, s35
            v_add_u32 v232, v235, v234
            v_lshl_add_u32 v234, v235, 1, v234
            v_lshrrev_b32 v233, 4, v1
            v_min_u32 v233, 1, v233
            v_lshl_or_b32 v234, v233, 31, v234
            v_lshrrev_b32 v233, 5, v1
            v_mul_u32_u24 v233, 0x%x, v233
            v_add3_u32 v233, v233, v232, s40
            s_mov_b32 s35, 114688""" % (114688 - 32768))
            tch('buffer_load_dword v235, v233, %s, s35 offen sc1' % WS).opt = True
            tch('buffer_load_dword v236, v234, %s, s38 offen sc1' % WS).opt = True
            tch('buffer_load_dword v237, v232, %s, s41 offen sc1' % WS).opt = True
            tch('k_tch:')
        if OPT['tch'] == 1:
            k.extend(tch)
        wload(k, OPT['pre1'])
        if OPT['tch'] == 2:
            k.extend(tch)

        def zf(u):
            return TRG + 8 * (u % 3)

        def unit_rd(u):
            return '\n'.join('ds_read2st64_b32 %s, v%d offset0:%d offset1:%d' % (vr(zf(u) + 2 * x, 2), ZR, 8 * u + 2 * x, 8 * u + 2 * x + 1) for x in range(4))

        def unit_pre(s, u):
            s.wait(dma[u])
            s(unit_rd(u))

        def unit_chk(s, u):
            z = zf(u)
            c = """v_max3_u32 v44, v%d, v%d, v%d
            v_max3_u32 v45, v%d, v%d, v%d
            v_max3_u32 v44, v44, v%d, v%d
            v_max_u32 v44, v44, v45
            v_cmp_eq_u32 vcc, -1, v44""" % tuple(range(z, z + 8))
            s(c)
            s('s_cbranch_vccnz k_zs%d\nk_zb%d:' % (u, u))
            slow('k_zs%d:' % u)
            ld = ['s_add_u32 s45, s45, 0x10000000'] if OPT['stamps'] else []
            for uu in range(u, 7 if OPT['np2'] else u + 1):
                if (uu - u) % 2 == 0:
                    ld.append('s_add_u32 m0, s39, %d\ns_add_u32 s35, s36, %d' % (2048 * uu, 2048 * uu))
                for ks in range(2):
                    ld.append('buffer_load_dwordx4 v%d, %s, s35 offen offset:%d sc1 lds' % (L16, WS, (uu - u) % 2 * 2048 + 1024 * ks))
            spin(slow, 'k_zp%d' % u, '\n'.join(ld), unit_rd(u) + '\ns_waitcnt lgkmcnt(0)\n' + c)
            slow('s_branch k_zb%d' % u)

        def unit_stats(s, u):
            b = BIG + 16 * u
            if u == 6:
                s('v_cndmask_b32 v%d, v%d, v%d, s[50:51]' % (b + 11, b + 11, SV))
                s('v_cndmask_b32 v%d, v%d, v%d, s[50:51]' % (b + 15, b + 15, SV + 1))
            for r in range(4):
                for sl in range(4):
                    x = b + 4 * sl + r
                    if u == 0 and r == 0:
                        s('v_mul_f32 v%d, v%d, v%d' % (SQ + sl, x, x))
                    else:
                        s('v_add_f32 v%d, v%d, v%d' % (SUM + sl, x - 1 if u == 0 and r == 1 else SUM + sl, x))
                        s('v_fmac_f32 v%d, v%d, v%d' % (SQ + sl, x, x))
        unit_pre(k, 0)
        unit_chk(k, 0)
        stamp(k, 8)
        for u in range(7):
            m, f = S(), S()
            for ks in range(2):
                for sl in range(4):
                    d = vr(BIG + 16 * u + 4 * sl, 4)
                    m('%s %s, %s, %s, %s' % (MF, d, vr(zf(u) + 4 * ks, 4), vr(btrg(sl >> 1, sl & 1, ks), 4), d))
            if u < 6:
                unit_pre(f, u + 1)
            if u:
                unit_stats(f, u - 1)
            wload(f, OPT['pu'])
            k.extend(weave(m, f, per=4))
            if u < 6:
                unit_chk(k, u + 1)
        if OPT['tch'] == 3:
            k.extend(tch)
        unit_stats(k, 6)
        for b in (SUM, SQ):
            k('v_permlane32_swap_b32 v%d, v%d\nv_permlane32_swap_b32 v%d, v%d' % (b, b + 2, b + 1, b + 3))
        for b in (SUM, SQ):
            k('v_add_f32 v%d, v%d, v%d\nv_add_f32 v%d, v%d, v%d' % (b, b, b + 2, b + 1, b + 1, b + 3))
        for b in (SUM, SQ):
            k('v_permlane16_swap_b32 v%d, v%d' % (b, b + 1))
        k('v_add_f32 v%d, v%d, v%d\nv_add_f32 v%d, v%d, v%d' % (SV, SUM, SUM + 1, SV + 1, SQ, SQ + 1))
        w = k('ds_write_b64 v%d, %s' % (STW, vr(SV, 2)))
        k('s_mov_b32 s35, %s\nv_mov_b32 v28, %s' % (f2h(1 / 448), f2h(1e-5)))
        wload(k, 2)
        k.wait(w)
        k('s_barrier')
        R = ACC + 12
        k('ds_read_b128 %s, v%d\nds_read_b128 %s, v%d offset:16' % (vr(R, 4), STR, vr(R + 4, 4), STR))
        wload(k, 2)
        P = ACC + 20
        k('''v_pk_add_f32 v[{r0}:{r1}], v[{r0}:{r1}], v[{r2}:{r3}]
        v_pk_add_f32 v[{r4}:{r5}], v[{r4}:{r5}], v[{r6}:{r7}]
        v_pk_add_f32 v[{r0}:{r1}], v[{r0}:{r1}], v[{r4}:{r5}]
        v_mul_f32 v{r0}, s35, v{r0}
        v_fma_f32 v{r1}, v{r1}, s35, v28
        v_fma_f32 v{r1}, -v{r0}, v{r0}, v{r1}
        v_rsq_f32 v{r2}, v{r1}
        v_mul_f32 v{r1}, {il}, v{r1}
        v_mul_f32 v{p0}, {nl}, v{r2}
        v_mul_f32 v{p1}, -v{r0}, v{p0}
        v_mul_f32 v{p2}, {nl}, v{r2}
        v_mul_f32 v{p3}, -v{r0}, v{p0}
        v_mul_f32 v{r1}, v{r1}, v{r2}
        v_permlane16_swap_b32 v{p0}, v{p2}
        v_permlane16_swap_b32 v{p1}, v{p3}
        ds_write_b64 v{fw}, v[{r0}:{r1}]
        v_mov_b32 v{p4}, v{p0}
        v_mov_b32 v{p5}, v{p1}
        v_mov_b32 v{p6}, v{p2}
        v_mov_b32 v{p7}, v{p3}
        v_permlane32_swap_b32 v{p0}, v{p4}
        v_permlane32_swap_b32 v{p1}, v{p5}
        v_permlane32_swap_b32 v{p2}, v{p6}
        v_permlane32_swap_b32 v{p3}, v{p7}'''.format(il=f2h(-1 / LOG2E), nl=f2h(-LOG2E), fw=FINW,
                                                    **{'r%d' % i: R + i for i in range(8)}, **{'p%d' % i: P + i for i in range(8)}))
        for u in range(7):
            for sl in range(4):
                b = BIG + 16 * u + 4 * sl
                for r in range(2):
                    k('v_pk_fma_f32 %s, %s, %s, %s op_sel:[0,0,1] op_sel_hi:[1,0,1]' % (vr(b + 2 * r, 2), vr(b + 2 * r, 2), vr(P + 2 * sl, 2), vr(P + 2 * sl, 2)))
            for sl in range(4):
                b = BIG + 16 * u + 4 * sl
                if sl < 2:
                    k('v_cvt_pk_bf16_f32 v%d, v%d, v%d\nv_cvt_pk_bf16_f32 v%d, v%d, v%d' % (b, b, b + 1, b + 1, b + 2, b + 3))
                    w = k('ds_write_b64 v%d, %s offset:%d' % (AD1, vr(b, 2), 512 * u + 14336 * sl))
                else:
                    k('v_cvt_pk_bf16_f32 v%d, v%d, v%d\nv_cvt_pk_bf16_f32 v%d, v%d, v%d' % (b + 1, b + 1, b, b, b + 3, b + 2))
                    w = k('ds_write_b64 v%d, %s offset:%d' % (AM, vr(b, 2), 512 * (6 - u) + 14336 * (sl - 2)))
            wload(k, 2)
        wload(k, RING)
        k('s_cmp_lg_u32 s3, 0')
        k.wait(w)
        return pl
    pl = prologue(k)
    k('s_barrier')
    stamp(k, 9)

    XB = {0: BIG, 1: BIG + 16, 3: BIG + 32, 5: 208, 7: 224, 9: 240, 11: BIG + 48, 13: BIG + 64}
    XB.update({ks: BIG + 80 + 16 * (j & 1) for j, ks in enumerate((2, 4, 6, 8, 10, 12))})

    def xn(a, ks, lay):
        if not NR[lay] and ks in (2, 4, 6, 8):
            return slot(48 + 2 * (ks - 2) + a)
        return vr(XB[ks] + 4 * a, 4)
    NR = (OPT['nr'], OPT['nr2'])
    A2, HV, O0, X1, D0, E0, MU, RW = BIG + 48, 88, 94, 48, 244, 252, 254, 44
    NM = 392 + 224
    CG = OPT['cg']
    P2 = OPT['nf'] < NPZ
    assert NA == NPZ

    def hoff(x):
        st = x // 4
        return (st & 1) * 64 * 28672 + (st >> 1) * 4096

    def hchk(regs, lay):
        out, r, tmp = [], [], [CK, FV, PD]
        regs = sorted(regs, key=lambda x: x[0])
        for x in regs:
            n = int(re.match(r'.\[(\d+):', x).group(1))
            if x[0] == 'a':
                if not tmp:
                    out.append('v_bitop3_b32 v%d, v%d, v%d, v%d bitop3:0x%x' % (CK, r[0], r[1], r[2], 0x80 if lay else 0xfe))
                    r, tmp = [CK], [FV, PD]
                t = tmp.pop(0)
                out.append('v_accvgpr_read_b32 v%d, a%d' % (t, n))
                n = t
            r.append(n)
        while len(r) > 2:
            out.append('v_bitop3_b32 v%d, v%d, v%d, v%d bitop3:0x%x' % (CK, r[0], r[1], r[2], 0x80 if lay else 0xfe))
            r = [CK] + r[3:]
        out.append('v_bitop3_b32 v%d, v%d, v%d, 1 bitop3:0x%x' % (CK, r[0], r[-1], 0x80 if lay else 0xa8))
        return '\n'.join(out + ['v_cmp_ne_u32 vcc, %d, v%d' % (lay, CK)])

    def build(est, lay):
        O = lambda x: OPT.get(x + '2', OPT[x]) if lay else OPT[x]
        use = {n: (4 * n, 4 * n + 3) for n in range(98)}
        order2, horder = [], []
        for st in range(14):
            ao = (0, 1, 2, 3) if st < 13 else (1, 2, 3, 0)
            o_ = [(a, t) for a in ao for t in range(4)]
            horder += [4 * st + a for a in ao]
            for j, (a, t) in enumerate(o_):
                g = 392 + 16 * st + j
                for key in (98 + 4 * st + t, ('h', 4 * st + a)):
                    use[key] = (use.get(key, (g, g))[0], g)
                order2.append((st, a, t))
        groups = [horder[j:j + CG] for j in range(0, 56, CG)]
        need = {}
        for gr in groups:
            for x in gr:
                need[x] = use[('h', gr[0])][0] - OPT['ck']
        P0 = PF if lay else RP
        lds = list(range(SA0, SA0 + 9)) + (list(range(154 - NB, 154)) if lay else [])
        wq = [n for n in range(P0, 154) if not (lay and n in lds)]
        chk = [O('ca'), O('cb'), O('cc'), O('cs')]
        plan, pace, todo = [], 1.0, list(horder)
        while wq or todo:
            hok = todo and pace >= chk[min(3, todo[0] // 16)]
            if hok and (not wq or need[todo[0]] <= use[wq[0]][0] + OPT['hb']):
                plan.append(('h', todo.pop(0), pace))
            elif wq:
                n = wq.pop(0)
                plan.append(('d' if n in lds else 'w', n, pace))
            else:
                pace = chk[min(3, todo[0] // 16)]
                continue
            pace += (O('p1') if pace < chk[0] else O('pA') if pace < chk[1] else O('pB') if pace < chk[2] else O('pc')) / 10
        if not lay:
            pace = max(pace, OPT['t0'])
            for n in range(RP, RP + NT):
                plan.append(('p', n, pace))
                pace += OPT['tp'] / 10
        for n in lds:
            plan.append(('r', n, use[n][0] - OPT['xl']))
        plan.sort(key=lambda z: z[2])
        pool = [(use[x][1] if x < P0 else -1 if x < 48 or NR[lay] else 336 + 4 * SORD.index(2 + 2 * ((x - 48) // 4)) + x % 4, slot(x)) for x in range(RING)]
        keep = {slot(x) for x in range(RP, RP + NT)} if not lay else set()
        hpool = [(336 + x, vr(BIG + 4 * x, 4)) for x in range(12)] + [(356 + x, vr(208 + 4 * x, 4)) for x in range(9)]
        hpool += [(est.get(('st', 2, 1), 999) + 1, vr(ACC + 4 * x, 4)) for x in range(3)]
        hpool += [(est.get('bar', 999) + 1, vr(ACC + 40 + 4 * x, 4)) for x in range(2)]
        hpool += [(est.get(('st', 3, 0), 999) + 1, vr(b, 4)) for b in (ACC + 32, ACC + 36, ACC + 48, ACC + 52)]
        reg = {x: slot(x) for x in range(P0)}
        dead = []
        qx, ql, qe, qs, qa, qc, qr = Q(), Q(), Q(), Q(), Q(), Q(), Q()
        wl = WL()
        hld, dm = {}, {}
        last = 0
        for kind, x, e in plan:
            s = S()
            if kind == 'd':
                dm[x] = wl.dma(s, x)
                dead.append((dm[x], use[SA0][0] - OPT['xl'] - 30))
                ql.add(s, e)
                continue
            if kind == 'p':
                fr = [z[0] for z in pool if z[1] == slot(x)][0]
                wl(s, x)
                ql.add(s, max(e, fr))
                continue
            key = ('h', x) if kind == 'h' else x
            pool.sort(key=lambda z: z[0])
            hpool.sort(key=lambda z: z[0])
            cand = [z for z in pool if z[1] not in keep or use[key][1] < OPT['t0']]
            if kind != 'r':
                e = max(e, last)
            if kind == 'h' and hpool[0][0] <= max(e, cand[0][0]):
                pl_, z = hpool, hpool[0]
            else:
                pl_, z = pool, cand[0]
            pl_.remove(z)
            fr, r = z
            reg[key] = r
            pl_.append((use[key][1], r))
            e = max(e, fr)
            if kind == 'r':
                if x == SA0 and dm:
                    s.wait(dm[SA0 + 8])
                j = staged(x)
                ld = s('ds_read_b128 %s, v%d offset:%d' % (r, PZ if j >= 14 else PA, 4096 * (j - 14 if j >= 14 else j)))
                dead.append((ld, use[x][0] - 5))
                qr.add(s, e)
                continue
            last = e
            if kind == 'w':
                ld = wl(s, x, r)
                dead.append((ld, use[key][0] - 8))
            else:
                if e <= est.get('hv', 0):
                    s('s_add_u32 s35, s%d, %d' % (16 + x % 4, hoff(x)))
                    ld = s('buffer_load_dwordx4 %s, v%d, %s, s35 offen %s' % (r, L16, WS, MOD[OPT['mh']]))
                else:
                    w_ = wl.window(s, 43, hoff(x))
                    ld = s('buffer_load_dwordx4 %s, v%d, %s, s%d offen %s' % (r, HV + x % 4, WS, w_, MOD[OPT['mh']]))
                hld[x] = ld
                dead.append((ld, need[x] - 8))
            if len(s) > 1:
                ql.add(S([s.pop(0)]), e - 1)
            ql.add(s, e)
        brs = []
        for j, gr in enumerate(groups):
            if OPT['nochk']:
                break
            s = S()
            s(hchk([reg[('h', x)] for x in gr], lay))
            brs.append(s('s_cbranch_vccnz k_hs%d_%d' % (lay, j)))
            s('k_hb%d_%d:' % (lay, j))
            qc.add(s, need[gr[0]] - (len(s) - 5) // 2)
            dead.append((brs[-1], use[('h', gr[0])][0] - 1))
        mf = S()
        xuse = []
        for p in range(3):
            for ks in range(14):
                xuse.append((ks, len(mf), 4))
                for mat in range(2):
                    for a in range(4):
                        d = vr(ACC + 32 * (p & 1) + 16 * mat + 4 * a, 4)
                        mf('%s %s, %s, %s, %s' % (MF, d, reg[len(mf) // 4], xn(a, ks, lay), d if ks else '0'))
        for j, ks in enumerate(SORD):
            xuse.append((ks, len(mf), 0))
            for a in range(4):
                d = vr(ACC + 32 + 4 * a, 4)
                mf('%s %s, %s, %s, %s' % (MF, d, reg[len(mf) // 4], xn(a, ks, lay), d if j else '0'))
        for st, a, t in order2:
            d = vr(A2 + 16 * a + 4 * t, 4)
            mf('%s %s, %s, %s, %s' % (MF, d, reg[98 + 4 * st + t], reg[('h', 4 * st + a)], d if st else '0'))
        assert len(mf) == NM
        cur, nrd = {}, 0
        for ks, g, ext in xuse:
            old = cur.get(xn(0, ks, lay))
            cur[xn(0, ks, lay)] = (ks, g + ext)
            if g < 16 or (old and old[0] == ks):
                continue
            for a in range(4):
                s = S()
                r = s(xrd(a, ks, lay))
                qx.add(s, old[1] + 4 + 2 * (a >> 1) if old else nrd // 2 * 3)
                nrd += 1
                dead.append((r, g + a - 6))
        qx.items.sort(key=lambda z: z[0])
        un = [0]

        def unit(s, G, U, R, sel=False):
            t = TMP + 4 * (un[0] & 1)
            un[0] += 1
            if sel:
                for j in range(4):
                    s('v_cndmask_b32 v%d, v%d, v%d, s[52:53]' % (t + j, G + j, U + j))
            for j in range(4):
                s('v_exp_f32 v%d, v%d' % (t + j, t + j if sel else G + j))
            if OPT['pk']:
                for j in (0, 2):
                    s('v_pk_mul_f32 %s, %s, %s' % (vr(G + j, 2), vr(G + j, 2), vr(U + j, 2)))
                for j in (0, 2):
                    s('v_pk_fma_f32 %s, %s, s[54:55], s[54:55] op_sel_hi:[1,0,0]' % (vr(t + j, 2), vr(t + j, 2)))
            else:
                for j in range(4):
                    s('v_mul_f32 v%d, v%d, v%d' % (G + j, G + j, U + j))
                for j in range(4):
                    s('v_fma_f32 v%d, v%d, s54, s54' % (t + j, t + j))
            for j in range(4):
                s('v_rcp_f32 v%d, v%d' % (t + j, t + j))
            if OPT['pk']:
                for j in (0, 2):
                    s('v_pk_mul_f32 %s, %s, %s' % (vr(t + j, 2), vr(t + j, 2), vr(G + j, 2)))
            else:
                for j in range(4):
                    s('v_mul_f32 v%d, v%d, v%d' % (t + j, t + j, G + j))
            for j in range(2):
                s('v_cvt_pk_bf16_f32 v%d, v%d, v%d' % (R + j, t + 2 * j, t + 2 * j + 1))
        mark = {}

        def pair(s, G, ph, P, sel=False):
            for z in range(2):
                unit(s, G + 4 * z, G + 16 + 4 * z, G + 2 * z, sel)
            if 0 < ph < 3 and P == 0:
                s('s_add_u32 s44, s42, %d' % (8192 * ph))
            for j in range(2):
                s('v_permlane32_swap_b32 v%d, v%d' % (G + j, G + 2 + j))
            s('v_or_b32 v%d, 1, v%d' % (G, G) if lay else 'v_and_b32 v%d, -2, v%d' % (G, G))
            mark[('st', ph, P)] = s('buffer_store_dwordx4 %s, v%d, %s, s%d offen %s' % (vr(G, 4), (HO, HT)[P] if ph < 3 else HS, WS, 44 if 0 < ph < 3 else 42, MOD[OPT['ms']]))
        if P2 and not lay:
            s = S()
            s('s_mov_b32 s34, 0x%x' % FLG)
            s('buffer_store_dword v%d, v%d, %s, s34 offen sc1' % (L16, FV, WS))
            qs.add(s, OPT['g2f'])
            s = S()
            p2 = s('buffer_load_dword v%d, v%d, %s, s34 offen sc1' % (PD, PA, WS))
            qs.add(s, OPT['g2p'])
            s = S()
            s.wait(p2)
            s('v_cmp_ne_u32 vcc, 0, v%d\ns_cbranch_vccnz k_p2\nk_p2b:' % PD)
            mark['p2'] = s[-2]
            qs.add(s, OPT['g2c'])
        s = S()
        if lay:
            s('v_add_u32 v%d, s62, v%d' % (PA, L16))
        else:
            s('v_add_u32 v%d, s62, v%d\nv_add_u32 v%d, %d, v%d' % (PZ, L16, PZ, L_H - L_WT, PZ))
        qa.add(s, 90)
        s = S()
        sw = [s('ds_write_b128 v%d, %s offset:%d' % (SXW, vr(ACC + 32 + 8 + 4 * z, 4), 1024 * z)) for z in range(2)]
        qs.add(s, 394)
        mark['sw'] = sw[1]
        for p in range(3):
            s = S()
            for P in range(2):
                pair(s, ACC + 32 * (p & 1) + 8 * P, p, P)
            qe.add(s, 112 * (p + 1) + 2)
            if p < 2:
                dead.append((mark[('st', p, 1)], 112 * (p + 2) - 2))
        c1 = S()
        c1('v_lshl_add_u32 v%d, s20, 10, v%d' % (HV, L16))
        for a in range(1, 4):
            c1('v_xor_b32 v%d, %d, v%d' % (HV + a, 1024 * a, HV))
        mark['hv'] = c1[-1]
        mark['c1'] = c1[0]
        qa.add(c1, est.get(('st', 1, 1), 0) + 1)
        c2 = S()
        c2("""v_add_u32 v{d}, s56, v{L16}
        v_min_u32 v{e}, 1, v3
        v_add_u32 v{e1}, s58, v{d}
        v_mad_i32_i24 v{e}, v{e}, s69, v{e1}
        v_add_u32 v{e1}, s57, v{d}
        v_lshl_add_u32 v{mu}, s20, 4, v2
        v_lshlrev_b32 v{mu}, 3, v{mu}
        v_add_u32 v{mu}, {fin}, v{mu}
        ds_read_u16 v{e}, v{e}
        ds_read_u16 v{e1}, v{e1}
        ds_read_b64 v[{mu}:{sg}], v{mu}
        ds_read_b128 v[{d4}:{d7}], v{d} offset:1024
        ds_read_b128 v[{d}:{d3}], v{d}""".format(d=D0, d3=D0 + 3, d4=D0 + 4, d7=D0 + 7, e=E0, e1=E0 + 1, mu=MU, sg=MU + 1, fin=L_FIN, L16=L16))
        mark['gath'] = c2[-1]
        qa.add(c2, max(370, est.get(('st', 2, 1), 0) + 1))
        s = S()
        s.wait(*(sw + [c2[-1]]))
        mark['bar'] = s('s_barrier')
        for z in range(2):
            s('ds_read_b128 %s, v%d offset:%d' % (vr(ACC + 48 + 4 * z, 4), SXP, 1024 * z))
        qs.add(s, OPT['sb'])
        s = S()
        pair(s, ACC + 32, 3, 0, True)
        qe.add(s, est.get('bar', 0) + 4)
        s = S()
        for P in range(2):
            for j in range(8):
                x, d = X1 + 8 * P + j, D0 + 4 * P + j // 2
                if j == 0:
                    s('v_lshlrev_b32 v%d, 16, v%d' % (x, E0 + P))
                else:
                    s('v_perm_b32 v%d, v%d, v%d, s%d' % (x, d, d - 1, 59 + (1 - j % 2)))
        for j in range(16):
            s('v_fma_f32 v%d, v%d, v%d, v%d' % (X1 + j, X1 + j, MU + 1, MU))
        s("""v_mul_u32_u24 v{o}, s61, v2
        v_mad_u32_u24 v{o}, v3, s63, v{o}
        v_add_u32 v{o}, s55, v{o}
        v_add_u32 v{o1}, 1, v3
        v_lshrrev_b32 v{o1}, 2, v{o1}
        v_lshl_add_u32 v{o1}, v{o1}, 31, v{o}
        v_lshl_add_u32 v{o1}, s63, 2, v{o1}
        v_add_u32 v{r3}, s39, v{L16}""".format(o=O0, o1=O0 + 1, r3=RW + 3, L16=L16))
        for a in range(1, 4):
            s('s_xor_b32 s34, s20, %d\ns_mul_i32 s34, s34, 14336\nv_add_u32 v%d, s34, v%d' % (a, RW + a - 1, L16))
        qe.add(s, 0)
        rw = []
        for a in range(1, 4):
            s = S()
            for t in range(4):
                rw.append(s('ds_write_b128 v%d, %s offset:%d' % (RW + a - 1, vr(A2 + 16 * a + 4 * t, 4), 1024 * (4 * (a - 1) + t))))
            qs.add(s, NM - 16 + 4 * (a - 1) + 3, 1)
        log = {}
        c1_ = est.get(('st', 3, 0), 999) + 1 if OPT['c1'] == 0 else OPT['c1']
        o, left = sched(mf, [qx, qs, qc, qr, ql, qa, qe], log, lambda g: O('cap') if O('c0') <= g < c1_ else 2)
        got = {key: log.get(id(v), 9999) for key, v in mark.items()}
        return o, left, got, dead, log, rw, groups, brs, hld, reg

    def xrd(a, ks, lay):
        return 'ds_read_b128 %s, v%d offset:%d' % (xn(a, ks, lay), VO if a < 2 else VT, 14336 * (a & 1) + 1024 * ks)

    def gemm(k, lay):
        est = {}
        for it in range(14):
            o, left, got, dead, log, rw, groups, brs, hld, reg = build(est, lay)
            if all(got[x] <= est.get(x, -1) for x in got):
                break
            est = {x: got[x] if it < 4 else max(got[x], est[x]) for x in got}
        else:
            assert 0
        if OPT['rep']:
            print(sorted(got.items(), key=lambda z: z[1]), 'left', [x.mn for x in left])
            hid = {id(x) for x in hld.values()}
            print('at/lead', ' '.join(('h' + i.ops[0][0] if id(i) in hid else 'd' if i.cls == 'dma' else '') + '%d/%d' % (log.get(id(i), 9999), d + 8 - log.get(id(i), 9999)) for i, d in dead if i.cls in ('vld', 'dma')))
        for ins, d in dead:
            assert log.get(id(ins), 9999) <= d, (ins.text, log.get(id(ins)), d)
        assert got['sw'] < got['bar'] - 1 and got['gath'] < got['bar'] - 1 and got['hv'] < 345 and got[('st', 1, 1)] < got['c1']
        pos = {id(x): j for j, x in enumerate(o)}
        if 'p2' in got:
            assert got['p2'] < min(log[id(x)] for x in hld.values()) and OPT['g2f'] < 80
        for j, br in enumerate(brs):
            ld, w_ = [], None
            for gr in groups[j:]:
                for x in gr:
                    if pos[id(hld[x])] < pos[id(br)] and (x // 4 - groups[j][0] // 4) % 2 == 0 and (OPT['sp'] == 0 or x // 16 == groups[j][0] // 16):
                        if hoff(x) != w_:
                            w_ = hoff(x)
                            ld.append('s_add_u32 s35, s43, %d' % w_)
                        ld.append('buffer_load_dwordx4 %s, v%d, %s, s35 offen sc1' % (reg[('h', x)], HV + x % 4, WS))
            slow('k_hs%d_%d:' % (lay, j))
            if OPT['stamps']:
                slow('s_add_u32 s45, s45, %d' % (1 << (8 * min(3, groups[j][0] // 16))))
            spin(slow, 'k_hp%d_%d' % (lay, j), '\n'.join(ld), hchk([reg[('h', x)] for x in groups[j]], lay))
            slow('s_branch k_hb%d_%d' % (lay, j))
        if OPT['stamps'] in (1, 2):
            for g_, n_ in ((520, 12), (392, 10)) if OPT['stamps'] == 1 else list(zip(SG, (1, 2, 3, 4, 5, 6, 8, 10, 12)))[::-1]:
                i = [j for j, x in enumerate(o) if x.cls == 'mfma'][g_]
                s = S()
                stamp(s, n_, True)
                o[i + 1:i + 1] = s
        if OPT['nost']:
            o = [x for x in o if x.cls != 'vst']
        for n in range(8):
            k(xrd(n % 4, n // 4, lay))
        k.extend(o)
        k.extend(left)
        stamp(k, 11)
        for j in range(8):
            k('v_pk_add_f32 %s, %s, %s' % (vr(A2 + 2 * j, 2), vr(A2 + 2 * j, 2), vr(X1 + 2 * j, 2)))
        k.wait(*rw)
        k('s_barrier')
        for P in range(2):
            for a in range(3):
                for t in range(2 * P, 2 * P + 2):
                    k('ds_read_b128 %s, v%d offset:%d' % (vr(BIG + 16 * a + 4 * t, 4), RW + 3, 1024 * (4 * a + t)))
        for P in range(2):
            for a in range(3):
                for j in range(4 * P, 4 * P + 4):
                    k('v_pk_add_f32 %s, %s, %s' % (vr(A2 + 2 * j, 2), vr(A2 + 2 * j, 2), vr(BIG + 16 * a + 2 * j, 2)))
            b = A2 + 8 * P
            for j in range(4):
                k('v_cvt_pk_bf16_f32 v%d, v%d, v%d' % (b + j, b + 2 * j, b + 2 * j + 1))
            k('buffer_store_dwordx4 %s, v%d, %s, 0 offen%s' % (vr(b, 4), O0 + P, SO if lay else WS, '' if lay else ' sc1'))
        stamp(k, 13)
    k('s_cbranch_scc1 k_g2')
    gemm(k, 0)
    if P2:
        slow('k_p2:')
        spin(slow, 'k_p2s', 'buffer_load_dword v%d, v%d, %s, s34 offen sc1' % (PD, PA, WS), 'v_cmp_ne_u32 vcc, 0, v%d' % PD)
        slow('s_branch k_p2b')
    wl = WL()
    for n in range(RP + NT, RP + NT + R1):
        wl(k, n)
    stamp(k, 14)
    stamp_save(k, 0)
    b_trig(k)
    k("""s_mov_b32 s3, 1
    s_mov_b32 s100, 2048
    s_mov_b32 s101, 0x4000
    s_mov_b32 s4, s8
    s_mov_b32 s5, s9
    s_mov_b32 s6, s10
    s_add_u32 s36, s36, 0x%x
    s_add_u32 s37, s37, 0x%x
    s_lshl_b32 s55, s24, 10
    s_add_u32 s55, s55, s27
    s_mul_i32 s55, s55, 896
    s_mul_i32 s35, s22, 112
    s_add_u32 s55, s55, s35
    s_mov_b32 s61, 57344
    s_mov_b32 s63, 16""" % (Z2 - Z1, Z2 - Z1))
    k.extend(kl2)
    k('k_g2:')
    k.reset()
    k.append(Seed(pl))
    gemm(k, 1)
    if OPT['stamps']:
        k('s_waitcnt vmcnt(0)')
        stamp(k, 14)
        stamp_save(k, 1)
        k("""s_lshl_b32 s35, s2, 2
        s_add_u32 s35, s35, s20
        s_lshl_b32 s35, s35, 8
        s_add_u32 s35, s35, 0x%x
        v_lshlrev_b32 v28, 2, v1
        buffer_store_dword v%d, v28, %s, s35 offen""" % (STP, STV, WS))
    k('k_end:\ns_endpgm')
    k.extend(slow)
    k.reset()
    k("""k_xre:
    s_cmp_eq_u32 s101, 0
    s_cbranch_scc1 k_xok
    s_sub_u32 s101, s101, 1
    s_waitcnt vmcnt(0) lgkmcnt(0)
    s_nop 7
    s_nop 7
    s_branch k_l2""")
    k("""k_rre:
    s_cmp_eq_u32 s101, 0
    s_cbranch_scc1 k_join
    s_sub_u32 s101, s101, 1
    s_mov_b32 s1, s29
    k_res:""")
    for n in range(14):
        k('s_add_u32 m0, s39, %d' % (1024 * n))
        if n and n & 1 == 0:
            k('s_add_u32 s1, s1, s100')
        k('buffer_load_dwordx4 v%d, %s, s1 offen sc1 lds' % (60 + (n & 1), SX_))
    k('s_waitcnt vmcnt(0)\ns_branch k_a2t')
    k.extend(kidle)
    k('k_last:')
    k('s_endpgm')
    return k


HDR = open('cdna_kernels/%s.s.ref' % NAME).read().split('; Override launch geometry')[0]


def main():
    out = [HDR.rstrip()]
    if OPT['stamps'] == 2:
        out.append('; SG ' + ' '.join(map(str, SG)))
    if OPT['stamps'] == 3:
        out.append('; S3')
    out.append('; @launch grid=(256,1,1) block=(256,1,1) lds=%d' % LDS)
    out.append('.amdgcn_target "amdgcn-amd-amdhsa--gfx950"\n.text')
    out += finalize(gen())
    out.append('''.section .rodata,"a"
.p2align 6
.amdhsa_kernel %s_kernel
  .amdhsa_next_free_vgpr 512
  .amdhsa_next_free_sgpr 102
  .amdhsa_accum_offset 256
  .amdhsa_group_segment_fixed_size 0
  .amdhsa_kernarg_size 96
  .amdhsa_user_sgpr_count 2
  .amdhsa_user_sgpr_kernarg_segment_ptr 1
  .amdhsa_system_sgpr_workgroup_id_x 1
.end_amdhsa_kernel
''' % NAME)
    open(sys.argv[1], 'w').write('\n'.join(out) + '\n')


main()
```

```python
import sys, os, struct, re
sys.path.insert(0, os.path.dirname(os.path.abspath(__file__)))
from asmlib import *

NAME = 'interleave_layers__spectral_fnet__swiglu_ffn__prompt'
W1P, W2P, Z1, Z2, X2, FLG, STP, PART = 0, 0x310000, 0x500000, 0x700000, 0x8C0000, 0xB00000, 0xB10000, 0xC00000
WSN = 0x1A00000
XBYTES = 1835008
OOB = 0x80000000
OPT = dict(stamps=0, clk=0, r1=8, rp=40, nt=16, t0=556, tp=30, nb=14, ca2=300, cb2=385, cc2=455, cs2=510, pc2=40, p12=45, pA=28, pB=28, pA2=52, pB2=44, pk=0, rot=1, cap=4, cap2=4, sp=1, tch=0, c02=336, xl=14, nr=0, nr2=1, hb=0, a0=4, pre1=10, ev=4, ord=2, lt=3, eb=1, rw=0, rwp=0, dbg=0, fst=0, zp=0, mo=4, f0=2, late=1, ws0=60, cpf=0, nf=0, nz=0, na=11, pa=14, er=1, pd=0, np2=1, wa=12, skip=0, tt=0, wn=0, msk=0, mw=0, mh=0, ms=0, ng0=6, ngs=12, pm=0, g2f=4, g2p=200, g2c=320, pw0=110, pev=5, cg=4, ck=5, qp=1, ca=336, amaj=1, sb=397, pu=3, kd=46, ks=5, kw=6, np0=8, zexp=0, rep=0, fs=6, fl=35, cb=385, cc=450, cs=505, pl=25, c0=336, c1=0, pc=28, p1=36, nochk=0, hw2=0, nost=0, nop2=0)
SG = [112, 224, 260, 336, 392, 456, 490, 520, 584]
for a in sys.argv[2:]:
    k_, v_ = a.split('=')
    if k_ == 'sg':
        SG = [int(x) for x in v_.split(',')]
    else:
        OPT[k_] = int(v_)
MF = 'v_mfma_f32_16x16x32_bf16'
L_WT, L_H, L_ST, L_FIN, L_SX, LDS = 57344, 114688, 151552, 153600, 155648, 163840
RING = 64
SA0 = 114
LOG2E = 1.4426950408889634
SX_, WS, SO, SW, SD = 's[4:7]', 's[8:11]', 's[12:15]', 's[16:19]', 's[64:67]'
L16, ZR, AD1, AM, VO, VT, HO, HT, HS, PZ, STW, STR, FINW, SXW, SXP, PD, PA = range(4, 21)
WR, ZO, BP = 248, 249, 250
BTR = 64
STV = 23
TMP, ACC, BIG, TRG = 24, 32, 96, 208
SPIN = 0x20000
MOD = ('sc1', 'sc0 sc1', 'sc1 nt', 'sc0 sc1 nt', '', 'nt', 'sc0')
HG1 = PART
NPZ = 11
FV, CK = 22, 21


def f2h(x):
    return '0x%08x' % struct.unpack('<I', struct.pack('<f', x))[0]


def stamp(k, i, force=False):
    if i == 15:
        return
    if OPT['stamps'] == 2 and i in (1, 2, 3, 4, 5, 6, 8, 10, 12) and not force:
        return
    if OPT['stamps'] == 3 and i in (8, 9, 10, 11, 12, 13) and not force:
        return
    if OPT['stamps'] != 3 and force == 3:
        return
    if OPT['stamps']:
        k('%s s[%d:%d]' % ('s_memtime' if OPT['clk'] else 's_memrealtime', 70 + 2 * i, 71 + 2 * i))


def stamp_save(k, lay):
    if OPT['stamps']:
        k('s_waitcnt lgkmcnt(0)')
        for i in range(15):
            k('v_writelane_b32 v%d, s%d, %d' % (STV, 70 + 2 * i, 16 * lay + i))
        k('v_writelane_b32 v%d, s45, %d\ns_mov_b32 s45, 0' % (STV, 32 + lay))


def srd(k, d, lo, n):
    if lo != d:
        k('s_mov_b32 s%d, s%d\ns_mov_b32 s%d, s%d' % (d, lo, d + 1, lo + 1))
    k('s_mov_b32 s%d, 0x%x\ns_mov_b32 s%d, 0x00020000' % (d + 2, n, d + 3))


def spin(k, name, load, cmp):
    k('s_mov_b32 s68, 0')
    k('%s:' % name)
    k(load)
    k('s_add_u32 s68, s68, 1\ns_waitcnt vmcnt(0)')
    k(cmp)
    k('''s_cmp_ge_u32 s68, 0x%x
    s_cbranch_scc1 %s_go
    s_nop 2
    s_cbranch_vccnz %s''' % (SPIN, name, name))
    k('%s_go:' % name)


SEQ = [((40, 21, 25)[p], 1024 * x) for p in range(3) for x in range(28)]
SORD = [0, 1, 3, 10, 12, 5, 7, 9, 2, 4, 11, 13, 6, 8]
SEQ += [(38, 2048 * ks) for ks in SORD]
SEQ += [((26, 31, 33)[x // 16], 1024 * (x % 16)) if x < 48 else (41, 1024 * x) for x in range(56)]
KS2 = [1, 2, 3, 4, 5, 6, 0]


def slot(n):
    return ar(4 * n, 4)


def staged(n):
    return n - 140 if n >= 140 else n - SA0 + 14


class WL:
    def __init__(self):
        self.win = {}
        self.cnt = 0

    def window(self, s, b, off):
        key = (b, off >> 12)
        if self.win.get(key) is None:
            reg = 46 + self.cnt % 4
            self.cnt += 1
            for x in self.win:
                if self.win[x] == reg:
                    self.win[x] = None
            self.win[key] = reg
            s('s_add_u32 s%d, s%d, %d' % (reg, b, off & ~4095))
        return self.win[key]

    def dma(self, s, n):
        b, off = SEQ[n]
        reg = self.window(s, b, off)
        s('s_add_u32 m0, s62, %d' % (4096 * staged(n) - (off & 4095)))
        return s('buffer_load_dwordx4 v%d, %s, s%d offen offset:%d sc1 lds' % (L16, WS, reg, off & 4095))

    def __call__(self, s, n, dst=None):
        b, off = SEQ[n]
        reg = self.window(s, b, off)
        return s('buffer_load_dwordx4 %s, v%d, %s, s%d offen offset:%d %s' % (dst or slot(n), L16, WS, reg, off & 4095, MOD[OPT['mw']]))


def raw_dma(k, soff):
    out = []
    for kp in range(7):
        for o in range(2):
            k('s_add_u32 m0, s39, %d' % (kp * 2048 + o * 1024 - 128 * kp))
            d = k('buffer_load_dwordx4 v%d, %s, s%d offen offset:%d lds' % (60 + o, SX_, soff, 128 * kp))
        out.append(d)
    return out


def raw_read(k, kp):
    for kap in range(2):
        r = k('ds_read_b128 %s, v%d offset:%d' % (ar(4 * (2 * kp + kap), 4), 26 + kap, 2048 * kp))
    return r


def raw_addr(k):
    k('''v_lshrrev_b32 v26, 1, v2
    v_xor_b32 v26, v3, v26
    v_lshlrev_b32 v26, 4, v26
    v_lshl_add_u32 v26, v2, 7, v26
    v_add_u32 v26, s39, v26
    v_xor_b32 v27, 64, v26''')


def a_trig(k):
    T = 232
    k('''v_lshl_add_u32 v{t}, s20, 4, v2
    v_cvt_f32_u32 v{t}, v{t}
    v_lshl_add_u32 v{t1}, v3, 8, s34
    v_xor_b32 v{t2}, 32, v{t1}
    v_cvt_f32_u32 v{t1}, v{t1}
    v_cvt_f32_u32 v{t2}, v{t2}
    v_mul_f32 v{t}, 0x3a000000, v{t}
    v_and_b32 v{t3}, 1, v2
    v_mul_u32_u24 v{t3}, 0x8000, v{t3}
    v_lshl_or_b32 v{t3}, v{t3}, 16, v{t3}'''.format(t=T, t1=T + 1, t2=T + 2, t3=T + 3))
    for bo in range(2):
        b = TRG + 12 * bo
        k('v_mul_f32 v%d, v%d, v%d' % (T + 4, T, T + 1 + bo))
        for r in range(1, 4):
            k('v_fmamk_f32 v%d, v%d, %s, v%d' % (T + 4 + r, T, f2h(64.0 * r), T + 4))
        for r in range(4):
            k('v_fract_f32 v%d, v%d' % (T + 4 + r, T + 4 + r))
        for r in range(4):
            k('v_sin_f32 v%d, v%d' % (T + 8 + r, T + 4 + r))
            k('v_cos_f32 v%d, v%d' % (T + 4 + r, T + 4 + r))
        for p in range(2):
            k('v_cvt_pk_bf16_f32 v%d, v%d, v%d' % (b + 4 + p, T + 8 + 2 * p, T + 9 + 2 * p))
            k('v_cvt_pk_bf16_f32 v%d, v%d, v%d' % (b + 2 + p, T + 4 + 2 * p, T + 5 + 2 * p))
        for p in range(2):
            k('v_xor_b32 v%d, 0x80008000, v%d' % (b + p, b + 4 + p))
        for p in range(6):
            k('v_xor_b32 v%d, v%d, v%d' % (b + 6 + p, T + 3, b + p))


def btrg(kind, h, ks):
    return BTR + ((kind * 2 + h) * 2 + ks) * 4


def b_trig(k):
    T = ACC
    k('''v_cvt_f32_u32 v%d, v2
    v_add_u32 v%d, s30, v2
    v_and_b32 v%d, 1, v3
    v_and_b32 v%d, 1, v2
    v_and_b32 v%d, 1, v%d
    v_cvt_f32_u32 v%d, v%d
    v_cvt_f32_u32 v%d, v3
    s_mov_b32 s35, 0x80008000
    v_mul_lo_u32 v%d, v%d, s35
    v_mul_lo_u32 v%d, v%d, s35
    v_mul_lo_u32 v%d, v%d, s35
    v_mul_f32 v%d, 0x3d000000, v%d
    v_mul_f32 v%d, 0xbd000000, v%d
    v_add_f32 v%d, 4.0, v%d
    v_add_f32 v%d, 4.0, v%d
    v_add_f32 v%d, 4.0, v%d''' % (T, T + 1, T + 2, T + 3, T + 4, T + 1, T + 1, T + 1, T + 8,
                                 T + 2, T + 2, T + 3, T + 3, T + 4, T + 4, T, T, T + 1, T + 1,
                                 T + 9, T + 8, T + 10, T + 9, T + 11, T + 10))
    for kind in range(2):
        for i in range(4):
            k('v_mul_f32 v%d, v%d, v%d' % (T + 12 + i, T + kind, T + 8 + i))
        for i in range(4):
            k('v_fract_f32 v%d, v%d' % (T + 12 + i, T + 12 + i))
        for i in range(4):
            k('v_sin_f32 v%d, v%d' % (T + 16 + i, T + 12 + i))
            k('v_cos_f32 v%d, v%d' % (T + 12 + i, T + 12 + i))
        for i in range(4):
            k('v_cvt_pk_bf16_f32 v%d, v%d, v%d' % (btrg(kind, 0, 0) + i, T + 12 + i, T + 16 + i))
        for i in range(4):
            k('v_xor_b32 v%d, v%d, v%d' % (btrg(kind, 0, 1) + i, T + 3 + kind, btrg(kind, 0, 0) + i))
        for i in range(8):
            k('v_xor_b32 v%d, v%d, v%d' % (btrg(kind, 1, 0) + i, T + 2, btrg(kind, 0, 0) + i))


def consts_a(k):
    k('''s_bfe_u32 s21, s2, 0x20001
    s_lshl_b32 s21, s21, 3
    s_bfe_u32 s35, s2, 0x30003
    s_add_u32 s21, s21, s35
    s_sub_u32 s26, 64, s21
    s_xor_b32 s28, s23, 1
    s_cmp_eq_u32 s21, 0
    s_cselect_b32 s26, 32, s26
    s_cselect_b32 s28, s23, s28
    s_cmp_eq_u32 s23, 0
    s_cselect_b32 s27, s21, s26
    s_mul_i32 s37, s20, %d
    s_lshl_b32 s35, s33, 12
    s_add_u32 s37, s37, s35
    s_lshl_b32 s35, s32, 6
    s_add_u32 s37, s37, s35
    s_add_u32 s37, s37, 0x%x
    s_lshl_b32 s1, s24, 10
    s_add_u32 s1, s1, s27
    s_mul_i32 s1, s1, 896
    s_mov_b32 s100, 128
    s_mov_b32 s101, 0
    s_mov_b32 s3, 0
    s_lshl_b32 s35, s20, 11
    s_add_u32 s35, s35, %d
    v_add_u32 v%d, s35, v%d
    v_xor_b32 v%d, 2048, v%d''' % (16 * 28672, Z1, L_SX, SXW, L16, SXP, SXW))


def consts_b(k):
    k('''s_and_b32 s22, s2, 1
    s_lshl_b32 s22, s22, 2
    s_lshr_b32 s35, s2, 6
    s_add_u32 s22, s22, s35
    s_cmp_eq_u32 s28, 0
    s_cselect_b32 s30, s21, s26
    s_min_u32 s30, s30, 1
    s_mul_i32 s31, s24, 7
    s_mul_i32 s36, s27, 14
    s_add_u32 s36, s36, s31
    s_lshl_b32 s36, s36, 11
    s_add_u32 s36, s36, 0x%x
    s_mul_i32 s35, s22, 14
    s_add_u32 s38, s35, s23
    s_mul_i32 s38, s38, 28672
    s_lshl_b32 s34, s24, 10
    s_add_u32 s38, s38, s34
    s_add_u32 s40, s35, s20
    s_add_u32 s40, s40, 2
    s_mul_i32 s40, s40, 28672
    s_lshl_b32 s41, s22, 2
    s_add_u32 s41, s41, s20
    s_mul_i32 s41, s41, 57344
    s_add_u32 s41, s41, 0x%x
    s_mul_i32 s42, s2, 28672
    s_add_u32 s42, s42, 0x%x
    s_and_b32 s43, s2, 0x3e
    s_lshl_b32 s35, s24, 7
    s_add_u32 s43, s43, s35
    s_add_u32 s43, s43, s23
    s_mul_i32 s43, s43, 28672
    s_add_u32 s43, s43, 0x%x
    s_lshl_b32 s62, s20, 10
    s_xor_b32 s17, s62, 1024
    s_xor_b32 s18, s62, 2048
    s_xor_b32 s19, s62, 3072
    s_add_u32 s16, s62, s43
    s_add_u32 s17, s17, s43
    s_add_u32 s18, s18, s43
    s_add_u32 s19, s19, s43
    s_add_u32 s62, s62, %d
    s_mov_b32 s50, 0
    s_mul_i32 s51, s24, 0xffff0000
    s_sub_u32 s52, 0, s24
    s_mov_b32 s53, s52''' % (Z1, W2P, HG1, HG1, L_WT))
    k('''v_lshlrev_b32 v{ZR}, 2, v1
    v_add_u32 v{ZR}, s39, v{ZR}
    v_lshrrev_b32 v28, 1, v3
    v_and_b32 v29, 1, v3
    v_lshlrev_b32 v30, 4, v2
    v_lshl_add_u32 v30, v28, 8, v30
    v_lshl_add_u32 v30, v29, 3, v30
    s_mul_i32 s35, s23, 28672
    s_lshl_b32 s34, s31, 9
    s_add_u32 s35, s35, s34
    v_add_u32 v{AD1}, s35, v30
    v_xor_b32 v30, 0x108, v30
    s_mul_i32 s35, s28, 28672
    s_add_u32 s35, s35, {c42}
    s_sub_u32 s35, s35, s34
    v_add_u32 v{AM}, s35, v30
    s_mul_i32 s35, s24, 28672
    v_add_u32 v{VO}, s35, v{L16}
    s_sub_u32 s35, 28672, s35
    v_add_u32 v{VT}, s35, v{L16}
    v_lshl_add_u32 v{HT}, v28, 9, v{L16}
    s_lshl_b32 s34, s24, 11
    s_lshl_b32 s35, s23, 9
    s_add_u32 s35, s35, s34
    s_add_u32 s35, s35, 24576
    v_add_u32 v{HS}, s35, v{HT}
    s_mul_i32 s34, s24, 2560
    s_lshl_b32 s35, s23, 12
    s_add_u32 s35, s35, s34
    v_add_u32 v{HO}, s35, v{HT}
    v_xor_b32 v{HT}, 2048, v{HO}
    v_mov_b32 v30, s23
    v_mov_b32 v31, s28
    v_cmp_eq_u32 vcc, 0, v28
    v_cndmask_b32 v30, v31, v30, vcc
    v_lshl_add_u32 v30, v30, 1, v29
    v_lshl_add_u32 v30, v30, 4, v2
    v_lshlrev_b32 v{STR}, 5, v30
    v_add_u32 v{STR}, {LST}, v{STR}
    v_lshl_add_u32 v{STW}, v28, 4, v{STR}
    s_lshl_b32 s35, s24, 3
    v_add_u32 v{STW}, s35, v{STW}
    v_lshlrev_b32 v{FINW}, 3, v30
    v_add_u32 v{FINW}, {LFIN}, v{FINW}
    v_lshlrev_b32 v0, 6, v0'''.format(ZR=ZR, AD1=AD1, AM=AM, VO=VO, VT=VT, HS=HS, HO=HO, HT=HT, STR=STR, STW=STW, FINW=FINW,
                                 L16=L16, c42=42 * 256, LH=L_H, LST=L_ST, LFIN=L_FIN))
    k('''s_mul_i32 s56, s22, 1792
    s_lshl_b32 s29, s27, 1
    s_add_u32 s29, s29, s24
    s_mul_i32 s29, s29, 14336
    s_add_u32 s29, s29, 0x%x
    s_add_u32 s55, s29, s56
    s_mov_b32 s61, 16
    s_mov_b32 s63, 256
    s_add_u32 s56, s56, s39
    s_mov_b32 s59, 0x05040c0c
    s_cmp_lt_u32 s22, 4
    s_cselect_b32 s57, -242, 0
    s_cselect_b32 s60, 0x03020c0c, s59
    s_cselect_b32 s59, s59, 0x07060c0c
    s_cmp_eq_u32 s22, 4
    s_cselect_b32 s58, -242, s57
    s_cmp_eq_u32 s22, 0
    s_cselect_b32 s58, 7168, s58
    s_sub_u32 s69, s57, s58
    s_add_u32 s57, s57, 1024
    s_mov_b32 s54, %s''' % (X2, f2h(LOG2E * LOG2E)))
    k('s_bfe_u32 s35, s2, 0x30003\ns_lshl_b32 s35, s35, 1\ns_lshr_b32 s35, 0x%x, s35\ns_and_b32 s35, s35, 3' % (0x4924 if OPT['rot'] else 0))
    for p in (1, 2, 0):
        k("""s_add_u32 s35, s35, 1
        s_cmp_eq_u32 s35, 3
        s_cselect_b32 s35, 0, s35
        s_mul_i32 s34, s35, 114688
        s_add_u32 s%d, s40, s34
        s_lshl_b32 s34, s35, 14
        s_add_u32 s%d, s41, s34""" % ((40, 21, 25)[p], (26, 31, 33)[p]))
    if OPT['stamps']:
        k('v_mov_b32 v%d, 0\ns_mov_b32 s45, 0' % STV)


def w2_decode(k, r, src, dst):
    k("""s_lshr_b32 s25, s{r}, 3
    s_and_b32 s{r}, s{r}, 7
    s_mul_i32 s{src}, s25, 28672
    s_mul_i32 s35, s{r}, 112
    s_add_u32 s{src}, s{src}, s35
    s_mul_i32 s35, s25, 9363
    s_lshr_b32 s35, s35, 16
    s_mul_i32 s34, s35, 7
    s_sub_u32 s34, s25, s34
    s_cmp_eq_u32 s34, 0
    s_cselect_b32 s34, 7, s34
    s_sub_u32 s34, s34, 1
    s_lshl_b32 s34, s34, 1
    s_and_b32 s25, s35, 1
    s_add_u32 s34, s34, s25
    s_lshr_b32 s35, s35, 1
    s_lshl_b32 s{r}, s{r}, 2
    s_add_u32 s35, s35, s{r}
    s_mul_i32 s35, s35, 14
    s_add_u32 s35, s35, s34
    s_lshl_b32 s35, s35, 12
    s_add_u32 s{dst}, s35, 0x{w2p:x}""".format(r=r, src=src, dst=dst, w2p=W2P))


def tr_addr(k, d, base, hi, odd):
    k("""v_bfe_u32 v{d}, v1, 2, 2
    v_lshl_add_u32 v{d}, v3, 3, v{d}
    v_lshlrev_b32 v{d}, 3, v{d}
    v_and_b32 v{e}, 1, v1
    v_add_u32 v{d}, v{d}, v{e}
    v_lshl_add_u32 v{d}, v{d}, 4, s{b}
    v_bfe_u32 v{e}, v1, 1, 1
    v_mad_u32_u24 v{d}, v{e}, {hi}, v{d}
    v_add_u32 v{e}, {odd}, v{d}""".format(d=d, e=d + 1, b=base, hi=hi, odd=odd))


def tr_read(k, d, adr, off):
    for t in range(4):
        for hh in range(2):
            k('ds_read_b64_tr_b16 %s, v%d offset:%d' % (vr(d + 4 * t + 2 * hh, 2), adr + (t & 1), off + 512 * hh + 64 * (t >> 1)))


def rawl(j):
    return L_H + 4096 * j if j < 8 else L_WT + 4096 * (j - 8)


def poison(k, lo, hi, d, t):
    lst = [(HG1, 7168, 1024 * x) for x in range(7)] + [(Z2, 3584, x) for x in (0, 1024, 2048, 2560)]
    cur = None
    if lo < hi:
        for x in range(4):
            k('v_mov_b32 v%d, -1' % (d + x))
    for b, st, off in lst[max(lo, OPT['skip']):hi]:
        if cur is None or cur[0] != st:
            k('s_lshl_b32 s{t}, s2, 2\ns_add_u32 s{t}, s{t}, s20\ns_mul_i32 s{t}, s{t}, {st}'.format(t=t, st=st))
            cur = (st, 0)
        w = b + (off & ~4095)
        if w != cur[1]:
            k('s_add_u32 s%d, s%d, 0x%x' % (t, t, w - cur[1]))
            cur = (st, w)
        k('buffer_store_dword%s %s, v%d, %s, s%d offen offset:%d %s' % ('' if OPT['pd'] else 'x4', vr(d, 1 if OPT['pd'] else 4), L16, WS, t, off & 4095, ('sc1', 'sc0 sc1', 'sc1 nt', 'sc0 sc1 nt')[OPT['pm']]))


SUM, SQ, SV = ACC, ACC + 4, ACC + 8


def gather(k):
    k('''v_and_b32 v30, 1, v3
    v_mul_u32_u24 v30, 240, v30
    v_add3_u32 v30, v30, v%d, 8
    s_mul_i32 s35, s28, 28672
    v_lshl_add_u32 v31, v2, 4, s35''' % AD1)
    rdq = []
    for u in range(7):
        for h in range(2):
            b = BIG + 16 * u + 4 * h
            k('ds_read_b64 %s, v%d offset:%d' % (vr(b, 2), AD1, 512 * u + 14336 * h))
            k('ds_read_b32 v%d, v30 offset:%d' % (b + 3, 512 * u + 14336 * h))
            k('ds_read_b64 %s, v%d offset:%d' % (vr(b + 10, 2), AM, 512 * (6 - u) + 14336 * h))
        if u == 6:
            for h in range(2):
                k('ds_read_b32 v%d, v31 offset:%d' % (SV + h, 14336 * h))
        for uu in ([u - 2] if u < 6 else [4, 5, 6]):
            if uu < 0:
                continue
            lo = lambda d, x: k('v_lshlrev_b32 v%d, 16, v%d' % (d, x))
            hi = lambda d, x: k('v_and_b32 v%d, 0xffff0000, v%d' % (d, x))
            for h in range(2):
                b = BIG + 16 * uu + 4 * h
                hi(b + 2, b + 1); lo(b + 1, b + 1); hi(b, b); lo(b + 3, b + 3)
                b += 8
                hi(b, b + 3); lo(b + 1, b + 3); lo(b + 3, b + 2); hi(b + 2, b + 2)
    for h in range(2):
        k('v_lshlrev_b32 v%d, 16, v%d' % (SV + h, SV + h))


def gen():
    k = S()
    k('.p2align 8\n.globl %s_kernel\n.type %s_kernel,@function\n%s_kernel:' % (NAME, NAME, NAME))
    stamp(k, 0)
    k("""s_load_dwordx2 s[4:5], s[0:1], 0
    s_load_dwordx8 s[56:63], s[0:1], 48
    s_load_dwordx4 s[64:67], s[0:1], 80
    s_cmp_ge_u32 s2, 256
    s_cbranch_scc1 k_end
    v_lshrrev_b32 v2, 6, v0
    v_and_b32 v1, 63, v0
    v_readfirstlane_b32 s20, v2
    v_lshrrev_b32 v3, 4, v1
    v_lshrrev_b32 v62, 3, v1
    v_and_b32 v63, 7, v1
    v_xor_b32 v60, v63, v3
    v_lshlrev_b32 v60, 4, v60
    s_mov_b32 s35, 57344
    v_mad_u32_u24 v60, v62, s35, v60
    v_xor_b32 v61, 64, v60
    v_add_u32 v61, 0x70000, v61
    s_and_b32 s32, s2, 7
    s_lshl_b32 s32, s32, 2
    s_bfe_u32 s35, s2, 0x20003
    s_add_u32 s32, s32, s35
    s_lshr_b32 s33, s2, 5
    s_lshr_b32 s23, s20, 1
    s_and_b32 s24, s20, 1
    s_mul_i32 s39, s20, 14336
    s_mov_b32 s6, 0x%x
    s_mov_b32 s7, 0x00020000
    s_cmp_ge_u32 s2, 224
    s_cbranch_scc1 k_idle1""" % XBYTES)
    rest = """v_lshlrev_b32 v63, 4, v63
    v_and_b32 v2, 15, v1
    v_lshlrev_b32 v%d, 4, v1
    s_mov_b32 s19, 0x00020000""" % L16
    PW = 64
    k("""s_lshl_b32 s43, s23, 5
    s_lshl_b32 s35, s24, 10
    s_add_u32 s43, s43, s35
    s_add_u32 s43, s43, s32
    s_mul_i32 s43, s43, 896
    s_mov_b32 s40, s33""")
    k0, k = k, S()
    k(rest)
    k("""s_lshl_b32 s45, s2, 2
    s_add_u32 s45, s45, s20
    s_mul_i32 s44, s20, 7168
    s_add_u32 s44, s44, %d
    s_mov_b32 s18, %d
    s_cmp_ge_u32 s2, 196
    s_cbranch_scc1 k_u2
    s_lshr_b32 s22, s45, 1
    s_mul_i32 s25, s22, 2341
    s_lshr_b32 s25, s25, 16
    s_mul_i32 s35, s25, 28
    s_sub_u32 s22, s22, s35
    s_lshl_b32 s46, s25, 5
    s_cmp_lt_u32 s25, 7
    s_addc_u32 s46, s46, 0
    s_mul_i32 s46, s46, 3584
    s_lshl_b32 s35, s22, 7
    s_add_u32 s46, s46, s35
    s_mul_i32 s47, s22, 56
    s_add_u32 s47, s47, s25
    s_lshl_b32 s47, s47, 1
    s_add_u32 s47, s47, s24
    s_lshl_b32 s47, s47, 10
    s_mov_b32 s48, 28672
    s_mov_b32 s49, 3584
    s_cmp_eq_u32 s25, 7
    s_cselect_b32 s21, %d, 0
    s_mov_b32 s52, 8
    s_mov_b32 s53, 32
    s_branch k_u3
    k_u2:
    s_sub_u32 s22, s45, 784""" % (L_H, 448 * 3584, 224 * 3584))
    w2_decode(k, 22, 46, 47)
    ZPAD = 'v_add_u32 v28, 16, v63\nv_lshrrev_b32 v28, 7, v28\nv_lshl_or_b32 v63, v28, 31, v63' if OPT['zp'] else ''
    k(ZPAD)
    k("""s_mov_b32 s48, 1024
    s_mov_b32 s49, 896
    s_mov_b32 s21, 0
    s_mov_b32 s52, 32
    s_mov_b32 s53, 8
    k_u3:
    v_mad_u32_u24 v63, v62, s49, v63
    v_add_u32 v63, s46, v63
    v_cmp_eq_u32 vcc, 0, v62
    v_mov_b32 v62, s21
    v_cndmask_b32 v62, 0, v62, vcc
    v_sub_u32 v62, v63, v62
    s_lshl_b32 s49, s49, 3""")
    srd(k, 8, 66, WSN)
    srd(k, 12, 62, XBYTES)
    srd(k, 64, 64, 256)
    dec, k = k, k0
    fw, fx, fp = S(), S(), S()
    fw("""s_cmp_eq_u32 s24, 0
    s_cselect_b32 s16, s56, s58
    s_cselect_b32 s17, s57, s59
    s_cmp_ge_u32 s2, 196
    s_cselect_b32 s16, s60, s16
    s_cselect_b32 s17, s61, s17""")
    for n in range(4):
        fw('s_add_u32 m0, s44, %d' % (1024 * n))
        if n > 1:
            fw('s_mul_i32 s46, s49, %d' % n)
        wd = fw('buffer_load_dwordx4 v%d, %s, %s offen lds' % (63 if n else 62, SW, ('0', 's49', 's46', 's46')[n]))
    stamp(fw, 12, 3)
    for kp in range(7):
        if kp:
            fx("""s_add_u32 s40, s40, 1
            s_cmp_eq_u32 s40, 7
            s_cselect_b32 s40, 0, s40""")
        fx("""s_lshl_b32 s42, s40, 11
        s_add_u32 m0, s42, s39
        s_lshl_b32 s41, s40, 7
        s_add_u32 s41, s41, s43""")
        fx('buffer_load_dwordx4 v60, %s, s41 offen lds' % SX_)
        fx('s_add_u32 m0, m0, 1024')
        xl = fx('buffer_load_dwordx4 v61, %s, s41 offen lds' % SX_)
    stamp(fx, 13, 3)
    if OPT['tt']:
        sel, fw = S(fw[:6]), S(fw[6:])
        sel('v_mov_b32 v53, s46\nbuffer_load_dword v53, v53, %s, 0 offen' % SW)
        if OPT['tt'] == 1:
            fx.extend(sel)
        else:
            dec.extend(sel)
    if OPT['wn']:
        j = [i for i, x in enumerate(fw) if x.cls == 'dma'][OPT['wn'] - 1] + 1
        fx.extend(fw[:j])
        fw = S(fw[j:])
    if OPT['ord'] == 1:
        fx.extend(fw)
    m = S()
    T = BIG
    m("""s_lshl_b32 s35, s33, 5
    s_lshl_b32 s34, s24, 4
    s_add_u32 s35, s35, s34
    s_add_u32 s35, s35, 1
    v_add_u32 v28, s35, v2
    v_and_b32 v31, 1, v28
    v_cvt_f32_u32 v28, v28
    v_mul_u32_u24 v31, 0x8000, v31
    v_mul_f32 v28, %s, v28
    v_lshl_or_b32 v31, v31, 16, v31
    s_lshl_b32 s35, s23, 7
    v_lshl_add_u32 v29, v3, 3, s35
    v_cvt_f32_u32 v29, v29
    v_mul_f32 v29, v28, v29
    s_mul_i32 s35, s24, 28672
    s_lshl_b32 s34, s23, 12
    s_add_u32 s35, s35, s34
    s_add_u32 s35, s35, %d
    v_add_u32 v30, s35, v%d""" % (f2h(-1 / 448), L_WT, L16))
    for kk in range(4):
        B = T + 32 * (kk & 1)
        n = 8 if kk < 3 else 4
        if kk == 3:
            m('s_mul_i32 s35, s23, %s\ns_mul_i32 s34, s23, 4088\nv_fma_f32 v29, v28, s35, v29\nv_subrev_u32 v30, s34, v30' % f2h(-124.0))
        for el in range(n):
            m('v_fmamk_f32 v%d, v28, %s, v29' % (B + el, f2h(32.0 * kk + el)))
        for el in range(n):
            m('v_sin_f32 v%d, v%d' % (B + n + el, B + el))
            m('v_cos_f32 v%d, v%d' % (B + el, B + el))
        for x in range(n):
            m('v_cvt_pk_bf16_f32 v%d, v%d, v%d' % (B + 16 + x, B + 2 * x, B + 2 * x + 1))
        for x in range(n):
            m('v_xor_b32 v%d, v31, v%d' % (B + 24 + x, B + 16 + x))
        for fl in range(2):
            for p in range(2):
                m('ds_write_b%d v30, %s offset:%d' % (16 * n, vr(B + 16 + 8 * fl + n // 2 * p, n // 2), 14336 * p + 1024 * kk + 7168 * fl))
    tr_addr(m, 88, 44, 's52', 's53')
    raw_addr(m)
    i0 = [i for i, x in enumerate(fx) if x.cls == 'dma'][OPT['f0'] - 1] + 1
    k.extend(fx[:4])
    k('s_waitcnt lgkmcnt(0)')
    stamp(k, 8, 3)
    k.extend(fx[4:i0])
    stamp(k, 10, 3)
    k.extend(dec)
    pz = S()
    poison(pz, 0, OPT['nf'], 52, 50)
    m = weave(m, S(fx[i0:]), only=('valu',), every=OPT['ev'], start=OPT['ws0'])
    k.extend(pz[:4])
    m = weave(m, S(pz[4:]), only=('valu',), every=OPT['pev'], start=OPT['pw0'])
    if OPT['rep']:
        print('front valu', sum(x.cls == 'valu' for x in m), [(x.cls, sum(y.cls == 'valu' for y in m[:j])) for j, x in enumerate(m) if x.cls in VM])
    k.extend(m)
    stamp(k, 1)

    def w_out(k):
        for t in range(4):
            k('buffer_store_dwordx4 %s, v%d, %s, s47 offen sc1' % (vr(PW + 4 * t, 4), L16, WS)).opt = True
            if t < 3:
                k('s_add_u32 s47, s47, s48')
    consts_a(k)
    if OPT['ord'] == 2:
        k.extend(fw)
    stamp(k, 9, 3)
    k.wait(xl)
    stamp(k, 11, 3)
    for kp in range(7):
        raw_read(k, kp)
    if not OPT['ord']:
        k.extend(fw)
    k.extend(fp)
    stamp(k, 2, 3)
    k('s_waitcnt lgkmcnt(0)\ns_barrier')
    k0, k = k, S()

    k('k_idle1:')
    k.reset()
    k(rest)
    if OPT['cpf']:
        k("""s_getpc_b64 s[26:27]
        k_pc:
        s_bfe_u32 s21, s2, 0x20003
        s_lshl_b32 s21, s21, 2
        s_add_u32 s21, s21, s20
        s_lshl_b32 s21, s21, 12
        v_lshl_add_u32 v40, v1, 6, s21
        v_min_u32 v40, k_last - %s_kernel, v40
        s_sub_u32 s26, s26, k_pc - %s_kernel
        s_subb_u32 s27, s27, 0
        global_load_dword v50, v40, s[26:27]""" % (NAME, NAME))
    k(ZPAD)
    k("""s_sub_u32 s21, s2, 224
    s_lshl_b32 s21, s21, 2
    s_add_u32 s21, s21, s20
    s_cmp_eq_u32 s21, 127
    s_cselect_b32 s22, 0, 0x%x
    v_mov_b32 v28, s22
    v_mov_b32 v36, 1
    v_mov_b32 v80, -1
    v_lshlrev_b32 v37, %d, v1
    v_add_u32 v37, s22, v37
    s_mov_b32 s49, 896
    v_mad_u32_u24 v63, v62, s49, v63
    s_add_u32 s55, s39, %d
    s_mov_b32 s18, %d""" % (OOB, OPT['fs'], L_WT, 1792 * 896))
    for n in range(3):
        k('s_add_u32 s22, s21, %d' % (112 + 128 * n))
        w2_decode(k, 22, 26 + n, 46 + n)
    k("""s_cmp_ge_u32 s21, 80
    s_cselect_b32 s28, 0x%x, s28
    s_cselect_b32 s48, 0x%x, s48
    s_waitcnt lgkmcnt(0)
    s_mov_b32 s16, s60
    s_mov_b32 s17, s61""" % (OOB, OOB))
    stamp(k, 8, 3)
    srd(k, 8, 66, WSN)
    srd(k, 12, 62, XBYTES)
    srd(k, 64, 64, 256)
    for x in range(4):
        zs = k('s_mov_b32 s35, 0x%x\nbuffer_store_dword v80, v37, %s, s35 offen sc1' % (FLG + (64 * x << OPT['fs']), WS))
    wd = []
    for n in range(3):
        k('v_add_u32 v%d, s%d, v63' % (40 + n, 26 + n))
        for z in range(4):
            k('s_add_u32 m0, s55, %d' % (4096 * n + 1024 * z))
            k('s_mov_b32 s35, %d' % (7168 * z))
            d = k('buffer_load_dwordx4 v%d, %s, s35 offen lds' % (40 + n, SW))
        wd.append(d)
    stamp(k, 9, 3)
    k.wait(zs)
    k('buffer_store_dword v36, v28, %s, 0 offen sc1' % SD)
    stamp(k, 1)
    tr_addr(k, 44, 55, 32, 8)
    consts_a(k)
    raw_dma(k, 1)
    poison(k, 0, OPT['nf'], 52, 50)
    stamp(k, 2, 3)
    for n in range(3):
        k('v_add_u32 v%d, s%d, v%d' % (40 + n, 46 + n, L16))
        k.wait(wd[n])
        tr_read(k, BIG + 16 * n, 44, 4096 * n)
    for n in range(3):
        for t in range(4):
            k('buffer_store_dwordx4 %s, v%d, %s, 0 offen offset:%d sc1' % (vr(BIG + 16 * n + 4 * t, 4), 40 + n, WS, 1024 * t))
    stamp(k, 10, 3)
    k('s_branch k_l1i')

    kidle, k = k, S()
    k('k_l2:')
    k("""s_lshl_b32 s0, s23, 5
    s_add_u32 s0, s0, s32
    s_lshl_b32 s0, s0, 1
    s_add_u32 s0, s0, s24
    s_mul_i32 s0, s0, 14336
    s_add_u32 s0, s0, 0x%x
    s_cmp_ge_u32 s2, 224
    s_cselect_b32 s0, s29, s0
    s_mov_b32 s1, s29
    v_mov_b32 v60, v%d
    v_add_u32 v61, 1024, v%d
    v_lshlrev_b32 v28, 7, v1
    v_add_u32 v29, 6144, v28""" % (X2, L16, L16))
    spin(k, 'k_pr', 'buffer_load_dword v30, v28, %s, s0 offen sc1\nbuffer_load_dword v31, v29, %s, s0 offen sc1' % (WS, WS),
         'v_max_u32 v30, v30, v31\nv_cmp_eq_u32 vcc, -1, v30')
    stamp(k, 0)
    k('s_cmp_ge_u32 s2, 224\ns_cbranch_scc1 k_res')
    xl2 = []
    for ks in range(14):
        if ks and ks % 4 == 0:
            k('s_add_u32 s0, s0, 4096')
        xl2.append(k('buffer_load_dwordx4 %s, v%d, %s, s0 offen offset:%d sc1' % (ar(4 * ks, 4), L16, WS, 1024 * (ks & 3))))
    R1, RP, NT, NB = OPT['r1'], OPT['rp'], OPT['nt'], OPT['nb']
    PF = RING if OPT['nr2'] else 48
    assert RP + NT + R1 <= PF and RP >= 16
    stamp(k, 1)
    k('s_branch k_kloop')
    kl2, k = k, k0

    k('k_kloop:')
    k.append(Seed(xl2))
    k('v_add_u32 v%d, %d, v%d' % (WR, L_WT, L16))
    T0, G0, S0, ONES, ZA = 32, 48, 52, 56, 232

    def wf(ks, t):
        return vr(BIG + 4 * ((4 * ks + t) % 28), 4)

    def wread(s, ks, t):
        return s('ds_read_b128 %s, v%d offset:%d' % (wf(ks, t), WR, 14336 * t + 1024 * ks))
    NP0 = OPT['np0']
    for n in range(NP0):
        wread(k, n // 4, n % 4)
    for i in range(4):
        k('v_mov_b32 v%d, 0x3f803f80' % (ONES + i))
    k("""s_lshl_b32 s34, s23, 5
    s_add_u32 s34, s34, s32
    s_lshl_b32 s35, s24, 10
    s_add_u32 s34, s34, s35
    s_mov_b32 s35, %s
    s_mov_b32 s68, 28672""" % f2h(1 / 448))
    stamp(k, 3)
    q0, q3, q4, f = Q(), Q(), Q(), S()
    for n in range(NP0, 28):
        wread(f, n // 4, n % 4)
    q0.add(f, 0)
    f = S()
    f('v_mov_b32 v28, %s\nv_mul_u32_u24 v%d, 80, v3' % (f2h(1e-5), BP))
    if OPT['zexp']:
        f('v_and_b32 v30, 8, v2\nv_lshlrev_b32 v30, 3, v30\nv_lshl_add_u32 v30, v3, 4, v30\nv_lshl_add_u32 v30, s32, 6, v30\nv_and_b32 v29, 7, v2\nv_mad_u32_u24 v%d, v29, s68, v30' % ZO)
        f('v_add_u32 v251, %d, v%d' % (8 * 28672 - 2048, ZO))
    else:
        f('v_lshlrev_b32 v30, 4, v3\nv_mad_u32_u24 v%d, v2, s68, v30' % ZO)
    f('v_xor_b32 v29, 4096, v%d\nv_xor_b32 v30, 4096, v%d' % (SXW, SXP))
    a_trig(f)
    q4.add(f, 0)
    f = S()
    for n in range(14):
        f('s_add_u32 m0, s39, %d' % (1024 * n))
        if n and n & 1 == 0:
            f('s_add_u32 s1, s1, s100')
        f('buffer_load_dwordx4 v%d, %s, s1 offen sc1 lds' % (60 + (n & 1), SX_))
    q3.add(f, OPT['kd'], OPT['ks'])
    LAG = 4
    mf, q1, q2 = S(), Q(), Q()
    for st in range(14 + LAG):
        if st < 14:
            x = ar(4 * st, 4)
            mf('%s %s, %s, %s, %s' % (MF, vr(G0, 4), x, x, vr(G0, 4) if st else '0'))
            mf('%s %s, %s, %s, %s' % (MF, vr(S0, 4), x, vr(ONES, 4), vr(S0, 4) if st else '0'))
            if st == 13:
                f = S()
                for r in range(4):
                    f('ds_bpermute_b32 v%d, v%d, v%d offset:%d' % (TMP + r, BP, G0 + r, 4 * r))
                for r in range(4):
                    f('v_mul_f32 v%d, s35, v%d' % (S0 + r, S0 + r))
                for r in range(4):
                    f('v_fma_f32 v%d, -v%d, v%d, v28' % (S0 + r, S0 + r, S0 + r))
                q2.add(f, len(mf) + 1)
                f = S()
                for r in range(4):
                    f('v_fma_f32 v%d, v%d, s35, v%d' % (TMP + r, TMP + r, S0 + r))
                for r in range(4):
                    f('v_rsq_f32 v%d, v%d' % (TMP + r, TMP + r))
                f('v_add_f32 v62, v%d, v%d\nv_add_f32 v63, v%d, v%d\nv_cmp_u_f32 vcc, v62, v63' % (TMP, TMP + 1, TMP + 2, TMP + 3))
                q2.add(f, len(mf) + 10)
        ks = st - LAG
        if ks >= 0:
            for t in range(4):
                d = vr(T0 + 4 * t, 4)
                mf('%s %s, %s, %s, %s' % (MF, d, ar(4 * ks, 4), wf(ks, t), d if ks else '0'))
                if ks < 7:
                    f = S()
                    wread(f, ks + 7, t)
                    q1.add(f, len(mf) - 1)
    o, left = sched(mf, [q2, q0, q1, q3, q4])
    g10 = [j for j, x in enumerate(o) if x.cls == 'mfma'][8 + 6 * 6]
    assert not any(x.cls == 'dma' for x in o[:g10])
    o[g10:g10] = [Ins('s_cmp_eq_u32 s3, 0'), Ins('s_cbranch_scc1 k_x10'), Ins('s_waitcnt vmcnt(0)'), Ins('k_x10:')]
    k.extend(o)
    id4 = {id(x) for e, x in q4.items}
    k.extend(x for x in left if x.cls == 'valu' and id(x) not in id4)
    late = S(x for x in left if x.cls != 'valu')
    nd = 14 - sum(x.cls == 'dma' for x in late)
    if OPT['rep']:
        print('K loop left', len(left), 'dma in loop', nd)
    k('s_cbranch_vccnz k_xre\nk_xok:')
    if OPT['late'] == 1:
        k('s_cmp_lg_u32 s3, 0\ns_cbranch_scc1 k_w1\ns_waitcnt vmcnt(%d)' % nd)
        tr_read(k, PW, 88, 0)
        k('k_w1:')
    k1, k = k, S()
    stamp(k, 4)
    AF = BIG
    wr = []
    for nu in range(2):
        for p in range(2):
            t = T0 + 8 * nu + 4 * p
            for r in range(2):
                k('v_pk_mul_f32 %s, %s, %s' % (vr(t + 2 * r, 2), vr(t + 2 * r, 2), vr(TMP + 2 * r, 2)))
        for p in range(2):
            t = T0 + 8 * nu + 4 * p
            for r in range(2):
                k('v_cvt_pk_bf16_f32 v%d, v%d, v%d' % (AF + 4 * nu + 2 * p + r, t + 2 * r, t + 2 * r + 1))
        wr.append(k('ds_write_b128 v%d, %s offset:%d' % (SXW, vr(AF + 4 * nu, 4), 1024 * nu)))

    def st1(x):
        for nu in range(2):
            for z in range(2):
                d = vr(ZA + 8 * nu + 4 * z, 4)
                k('%s %s, %s, %s, %s' % (MF, d, vr(AF + 8 * x + 4 * nu, 4), vr(TRG + 6 * x + (2 if z == 0 else 0), 4), d if x else '0'))
    k.extend(x for x in left if id(x) in id4)
    k.wait(*wr)
    if OPT['late'] == 1:
        k('s_cmp_lg_u32 s3, 0\ns_cbranch_scc1 k_w2')
        w_out(k)
        k('k_w2:')
    k('s_barrier')
    for x in (1, 2, 3):
        for nu in range(2):
            k('ds_read_b128 %s, v%d offset:%d' % (vr(AF + 8 * x + 4 * nu, 4), (None, SXP, 29, 30)[x], 1024 * nu))
    for x in range(4):
        st1(x)
    k1.extend(weave(k, late, only=('valu', 'mfma'), every=OPT['kw']))
    k = k1
    for nu in range(2):
        for r in range(4):
            k('v_cvt_pk_bf16_f32 v%d, v%d, v%d' % (ACC + 20 + 4 * nu + r, ZA + 8 * nu + r, ZA + 8 * nu + 4 + r))
        k('buffer_store_dwordx4 %s, v%d, %s, s37 offen offset:%d sc1' % (vr(ACC + 20 + 4 * nu, 4), 251 if nu and OPT['zexp'] else ZO, WS, 2048 * nu))
    stamp(k, 5)
    k('s_cmp_eq_u32 s3, 0\ns_cbranch_scc1 k_l1t')
    k('k_a2t:')
    wl = WL()
    f = S()
    for n in range(RP + NT + R1, PF):
        wl(f, n)
    for n in range(154 - NB, 154):
        wl.dma(f, n)
    fv = [j for j, x in enumerate(f) if x.cls in VM]
    A0 = min(OPT['a0'], len(fv))
    j0 = fv[A0 - 1] + 1 if A0 else 0
    k.extend(f[:j0])
    k('v_add_u32 v28, s39, v%d\ns_waitcnt vmcnt(%d)' % (L16, A0 + 2))
    for n in range(14):
        k('ds_read_b32 v%d, v28 offset:%d' % (232 + n, 1024 * n))
    if not OPT['wa']:
        k.extend(f[j0:])
    for n in range(7):
        k('v_max3_u32 v232, v232, v%d, v%d' % (233 + 2 * n, min(245, 234 + 2 * n)))
    k("""v_cmp_eq_u32 vcc, -1, v232
    s_cbranch_vccnz k_rre
    k_join:
    s_barrier""")
    m = S()
    gather(m)
    k.extend(weave(m, S(f[j0:]), only=('valu', 'dsr'), every=OPT['wa']) if OPT['wa'] else m)
    stamp(k, 2 if OPT['stamps'] == 1 else 15)
    k('s_branch k_pg_go' if OPT['np2'] else 's_branch k_gp')
    k('k_l1t:')
    k.reset()
    if OPT['late'] == 2:
        k('s_waitcnt vmcnt(16)')
        tr_read(k, PW, 88, 0)
        w_out(k)
    k('k_l1i:')
    if OPT['dbg']:
        k('s_lshl_b32 s34, s20, 8\nv_mov_b32 v28, s34\nbuffer_load_dword v63, v28, %s, 0 offen sc1' % SD)
    else:
        k('v_mov_b32 v28, 0\nbuffer_load_dword v63, v28, %s, 0 offen sc1' % SD)
    RWN = OPT['rw']
    rwd = S()
    if RWN:
        rwd("""s_and_b32 s46, s2, 1
        s_lshl_b32 s46, s46, 2
        s_lshr_b32 s35, s2, 6
        s_add_u32 s46, s46, s35
        s_mul_i32 s46, s46, 448
        s_add_u32 s46, s46, 64
        s_bfe_u32 s35, s2, 0x30003
        s_lshl_b32 s35, s35, 1
        s_lshr_b32 s34, 0x%x, s35
        s_lshr_b32 s35, 0x%x, s35
        s_and_b32 s34, s34, 3
        s_and_b32 s35, s35, 3
        s_lshl_b32 s34, s34, 7
        s_lshl_b32 s35, s35, 7
        s_add_u32 s47, s46, s35
        s_add_u32 s46, s46, s34
        s_lshl_b32 s48, s20, 10
        s_mov_b32 s35, 3584
        v_lshrrev_b32 v40, 3, v0
        v_and_b32 v41, 7, v0
        v_lshlrev_b32 v41, 4, v41
        v_cmp_eq_u32 vcc, 0, v40
        v_mad_u32_u24 v40, v40, s35, v41
        v_add_u32 v41, %d, v40
        v_cndmask_b32 v41, v41, v40, vcc""" % ((0x9249, 0x2492, 224 * 3584) if OPT['rot'] else (0x5555, 0xaaaa, 224 * 3584)))
        for mat in range(2):
            rwd('s_mov_b32 s16, s%d\ns_mov_b32 s17, s%d' % (56 + 2 * mat, 57 + 2 * mat))
            for j in range(RWN):
                p, x = divmod(RP + j, 28)
                if x & 1 != mat:
                    continue
                ks = x >> 1
                assert p in (1, 2)
                rwd('s_add_u32 m0, s48, %d' % rawl(j))
                if ks != 7:
                    rwd('s_add_u32 s35, s%d, %d' % (45 + p, (32 * ks + (ks < 7)) * 3584))
                rwd('buffer_load_dwordx4 v%d, %s, s%d offen lds' % (41 if ks == 7 else 40, SW, 45 + p if ks == 7 else 35))
    k.extend(rwd)
    poison(k, OPT['nf'], OPT['nf'] + OPT['nz'], 56, 35)
    k("""s_lshl_b32 s34, s2, %d
    v_mov_b32 v53, s34
    v_mov_b32 v52, 0x%x
    v_cmp_eq_u32 vcc, 0, v0
    v_cndmask_b32 v%d, v52, v53, vcc
    s_lshl_b32 s34, s24, 7
    s_add_u32 s34, s34, s23
    s_lshl_b32 s34, s34, 6
    v_lshl_add_u32 v%d, v1, 7, s34
    v_mov_b32 v52, 1""" % (OPT['fs'], OOB, FV, PA))
    consts_b(k)
    NA = min(NPZ, OPT['nf'] + OPT['nz'] + OPT['na'])
    pz, m, cv = S(), S(), S()
    poison(pz, OPT['nf'] + OPT['nz'], NA, 56, 44)
    b_trig(m)
    raw_addr(m)
    for kp in range(7):
        raw_read(cv, kp)
    cv('v_add_u32 v28, s39, v%d\ns_waitcnt lgkmcnt(0)' % L16)
    for ks in range(14):
        cv('ds_write_b128 v28, %s offset:%d' % (ar(4 * ks, 4), 1024 * ks))
    if OPT['er']:
        k.extend(m)
        m = S()
    if OPT['er'] == 2:
        k('s_waitcnt vmcnt(%d)' % (3 + OPT['nz']))
        k.extend(cv)
    k("""s_mov_b32 s35, 0x%x
    s_cmp_lg_u32 s20, 0
    s_waitcnt vmcnt(%d) lgkmcnt(0)""" % (FLG, OPT['nz'] + RWN))
    if OPT['fst']:
        stamp(k, 3)
    if OPT['dbg']:
        k('s_cbranch_scc1 k_flagA')
    k("""v_cmp_eq_u32 vcc, 0, v63
    v_mov_b32 v28, 0
    s_nop 4
    s_cbranch_vccz k_flagA""")
    spin(k, 'k_pz', 'buffer_load_dword v63, v28, %s, 0 offen sc1' % SD, 'v_cmp_eq_u32 vcc, 0, v63')
    k('k_flagA:')
    k('s_barrier')
    k('buffer_store_dword v52, v%d, %s, s35 offen sc1' % (FV, WS))
    stamp(k, 6)
    if OPT['er'] < 2:
        m.extend(cv)
        m('s_waitcnt lgkmcnt(0)\ns_barrier')
    gather(m)
    k.extend(pz[:4])
    k.extend(weave(m, S(pz[4:]), only=('valu', 'dsr', 'dsw'), every=OPT['pa']))
    stamp(k, 2 if OPT['stamps'] == 1 else 15)
    k('k_gp:')
    GP = 44
    k("""s_cmp_eq_u32 s3, 0
    s_cselect_b32 s35, 0x{flg:x}, s36
    s_cselect_b32 s34, 0x{oob:x}, 0
    s_cselect_b32 s68, -1, 0xfc0
    v_mov_b32 v28, 0x{oob:x}
    v_and_b32 v{p}, s68, v0
    v_add_u32 v{p1}, s34, v{p}
    v_add_u32 v{p3}, 10240, v{p1}
    v_add_u32 v{p2}, 8192, v{p1}
    v_add_u32 v{p1}, 4096, v{p1}""".format(flg=FLG, oob=OOB, p=GP, p1=GP + 1, p2=GP + 2, p3=GP + 3))
    spin(k, 'k_pg', '\n'.join('buffer_load_dword v%d, v%d, %s, s35 offen sc1' % (GP + 4 + n, GP + n, WS) for n in range(4)),
         '\n'.join('v_cmp_eq_u32 vcc, -1, v%d\nv_cndmask_b32 v%d, v28, v%d, vcc' % (GP + 4 + n, GP + n, GP + n) for n in range(4)) +
         '\nv_max3_u32 v%d, v%d, v%d, v%d\nv_max_u32 v%d, v%d, v%d\nv_cmp_eq_u32 vcc, -1, v%d' % (GP + 4, GP + 4, GP + 5, GP + 6, GP + 4, GP + 4, GP + 7, GP + 4))
    k('s_barrier')
    stamp(k, 7)
    slow = S()

    def prologue(k):
        wl = WL()
        pl = []

        def wload(s, cnt=1):
            for _ in range(cnt):
                if len(pl) < RP:
                    pl.append(wl(s, len(pl)))
        dma = []
        for u in range(7):
            if u % 2 == 0:
                k('s_add_u32 m0, s39, %d\ns_add_u32 s35, s36, %d' % (2048 * u, 2048 * u))
            for ks in range(2):
                d = k('buffer_load_dwordx4 v%d, %s, s35 offen offset:%d sc1 lds' % (L16, WS, (u % 2) * 2048 + 1024 * ks))
            dma.append(d)
        tch = S()
        if OPT['tch']:
            tch("""s_cmp_lg_u32 s3, 0
            s_cbranch_scc1 k_tch
            s_lshl_b32 s35, s2, 7
            s_and_b32 s35, s35, 0x1c00
            v_and_b32 v234, 7, v1
            v_lshlrev_b32 v234, 7, v234
            v_lshrrev_b32 v233, 3, v1
            v_lshl_add_u32 v235, v233, 13, s35
            v_add_u32 v232, v235, v234
            v_lshl_add_u32 v234, v235, 1, v234
            v_lshrrev_b32 v233, 4, v1
            v_min_u32 v233, 1, v233
            v_lshl_or_b32 v234, v233, 31, v234
            v_lshrrev_b32 v233, 5, v1
            v_mul_u32_u24 v233, 0x%x, v233
            v_add3_u32 v233, v233, v232, s40
            s_mov_b32 s35, 114688""" % (114688 - 32768))
            tch('buffer_load_dword v235, v233, %s, s35 offen sc1' % WS).opt = True
            tch('buffer_load_dword v236, v234, %s, s38 offen sc1' % WS).opt = True
            tch('buffer_load_dword v237, v232, %s, s41 offen sc1' % WS).opt = True
            tch('k_tch:')
        if OPT['tch'] == 1:
            k.extend(tch)
        wload(k, OPT['pre1'])
        if OPT['tch'] == 2:
            k.extend(tch)
        if RWN:
            k('s_cmp_lg_u32 s3, 0\ns_cbranch_scc1 k_rw\ns_lshl_b32 s35, s20, 5\ns_add_u32 s35, s35, %d' % L_H)
            tr_addr(k, 232, 35, 8, 0)
            for j in range(min(8, RWN)):
                for hh in range(2):
                    k('ds_read_b64_tr_b16 %s, v232 offset:%d' % (ar(4 * (RP + j) + 2 * hh, 2), 4096 * j + 512 * hh))
            k('s_waitcnt lgkmcnt(0)\nk_rw:')

        def zf(u):
            return TRG + 8 * (u % 3)

        def unit_rd(u):
            return '\n'.join('ds_read2st64_b32 %s, v%d offset0:%d offset1:%d' % (vr(zf(u) + 2 * x, 2), ZR, 8 * u + 2 * x, 8 * u + 2 * x + 1) for x in range(4))

        def unit_pre(s, u):
            s.wait(dma[u])
            s(unit_rd(u))

        def unit_chk(s, u):
            z = zf(u)
            c = """v_max3_u32 v44, v%d, v%d, v%d
            v_max3_u32 v45, v%d, v%d, v%d
            v_max3_u32 v44, v44, v%d, v%d
            v_max_u32 v44, v44, v45
            v_cmp_eq_u32 vcc, -1, v44""" % tuple(range(z, z + 8))
            s(c)
            s('s_cbranch_vccnz k_zs%d\nk_zb%d:' % (u, u))
            slow('k_zs%d:' % u)
            ld = ['s_add_u32 s45, s45, 0x10000000'] if OPT['stamps'] else []
            for uu in range(u, 7 if OPT['np2'] else u + 1):
                if (uu - u) % 2 == 0:
                    ld.append('s_add_u32 m0, s39, %d\ns_add_u32 s35, s36, %d' % (2048 * uu, 2048 * uu))
                for ks in range(2):
                    ld.append('buffer_load_dwordx4 v%d, %s, s35 offen offset:%d sc1 lds' % (L16, WS, (uu - u) % 2 * 2048 + 1024 * ks))
            spin(slow, 'k_zp%d' % u, '\n'.join(ld), unit_rd(u) + '\ns_waitcnt lgkmcnt(0)\n' + c)
            slow('s_branch k_zb%d' % u)

        def unit_stats(s, u):
            b = BIG + 16 * u
            if u == 6:
                s('v_cndmask_b32 v%d, v%d, v%d, s[50:51]' % (b + 11, b + 11, SV))
                s('v_cndmask_b32 v%d, v%d, v%d, s[50:51]' % (b + 15, b + 15, SV + 1))
            for r in range(4):
                for sl in range(4):
                    x = b + 4 * sl + r
                    if u == 0 and r == 0:
                        s('v_mul_f32 v%d, v%d, v%d' % (SQ + sl, x, x))
                    else:
                        s('v_add_f32 v%d, v%d, v%d' % (SUM + sl, x - 1 if u == 0 and r == 1 else SUM + sl, x))
                        s('v_fmac_f32 v%d, v%d, v%d' % (SQ + sl, x, x))
        unit_pre(k, 0)
        unit_chk(k, 0)
        stamp(k, 8)
        for u in range(7):
            m, f = S(), S()
            for ks in range(2):
                for sl in range(4):
                    d = vr(BIG + 16 * u + 4 * sl, 4)
                    m('%s %s, %s, %s, %s' % (MF, d, vr(zf(u) + 4 * ks, 4), vr(btrg(sl >> 1, sl & 1, ks), 4), d))
            if u < 6:
                unit_pre(f, u + 1)
            if u:
                unit_stats(f, u - 1)
            wload(f, OPT['pu'])
            k.extend(weave(m, f, per=4))
            if u < 6:
                unit_chk(k, u + 1)
        if OPT['tch'] == 3:
            k.extend(tch)
        unit_stats(k, 6)
        for b in (SUM, SQ):
            k('v_permlane32_swap_b32 v%d, v%d\nv_permlane32_swap_b32 v%d, v%d' % (b, b + 2, b + 1, b + 3))
        for b in (SUM, SQ):
            k('v_add_f32 v%d, v%d, v%d\nv_add_f32 v%d, v%d, v%d' % (b, b, b + 2, b + 1, b + 1, b + 3))
        for b in (SUM, SQ):
            k('v_permlane16_swap_b32 v%d, v%d' % (b, b + 1))
        k('v_add_f32 v%d, v%d, v%d\nv_add_f32 v%d, v%d, v%d' % (SV, SUM, SUM + 1, SV + 1, SQ, SQ + 1))
        w = k('ds_write_b64 v%d, %s' % (STW, vr(SV, 2)))
        k('s_mov_b32 s35, %s\nv_mov_b32 v28, %s' % (f2h(1 / 448), f2h(1e-5)))
        wload(k, 2)
        k.wait(w)
        k('s_barrier')
        R = ACC + 12
        k('ds_read_b128 %s, v%d\nds_read_b128 %s, v%d offset:16' % (vr(R, 4), STR, vr(R + 4, 4), STR))
        wload(k, 2)
        P = ACC + 20
        k('''v_pk_add_f32 v[{r0}:{r1}], v[{r0}:{r1}], v[{r2}:{r3}]
        v_pk_add_f32 v[{r4}:{r5}], v[{r4}:{r5}], v[{r6}:{r7}]
        v_pk_add_f32 v[{r0}:{r1}], v[{r0}:{r1}], v[{r4}:{r5}]
        v_mul_f32 v{r0}, s35, v{r0}
        v_fma_f32 v{r1}, v{r1}, s35, v28
        v_fma_f32 v{r1}, -v{r0}, v{r0}, v{r1}
        v_rsq_f32 v{r2}, v{r1}
        v_mul_f32 v{r1}, {il}, v{r1}
        v_mul_f32 v{p0}, {nl}, v{r2}
        v_mul_f32 v{p1}, -v{r0}, v{p0}
        v_mul_f32 v{p2}, {nl}, v{r2}
        v_mul_f32 v{p3}, -v{r0}, v{p0}
        v_mul_f32 v{r1}, v{r1}, v{r2}
        v_permlane16_swap_b32 v{p0}, v{p2}
        v_permlane16_swap_b32 v{p1}, v{p3}
        ds_write_b64 v{fw}, v[{r0}:{r1}]
        v_mov_b32 v{p4}, v{p0}
        v_mov_b32 v{p5}, v{p1}
        v_mov_b32 v{p6}, v{p2}
        v_mov_b32 v{p7}, v{p3}
        v_permlane32_swap_b32 v{p0}, v{p4}
        v_permlane32_swap_b32 v{p1}, v{p5}
        v_permlane32_swap_b32 v{p2}, v{p6}
        v_permlane32_swap_b32 v{p3}, v{p7}'''.format(il=f2h(-1 / LOG2E), nl=f2h(-LOG2E), fw=FINW,
                                                    **{'r%d' % i: R + i for i in range(8)}, **{'p%d' % i: P + i for i in range(8)}))
        for u in range(7):
            for sl in range(4):
                b = BIG + 16 * u + 4 * sl
                for r in range(2):
                    k('v_pk_fma_f32 %s, %s, %s, %s op_sel:[0,0,1] op_sel_hi:[1,0,1]' % (vr(b + 2 * r, 2), vr(b + 2 * r, 2), vr(P + 2 * sl, 2), vr(P + 2 * sl, 2)))
            for sl in range(4):
                b = BIG + 16 * u + 4 * sl
                if sl < 2:
                    k('v_cvt_pk_bf16_f32 v%d, v%d, v%d\nv_cvt_pk_bf16_f32 v%d, v%d, v%d' % (b, b, b + 1, b + 1, b + 2, b + 3))
                    w = k('ds_write_b64 v%d, %s offset:%d' % (AD1, vr(b, 2), 512 * u + 14336 * sl))
                else:
                    k('v_cvt_pk_bf16_f32 v%d, v%d, v%d\nv_cvt_pk_bf16_f32 v%d, v%d, v%d' % (b + 1, b + 1, b, b, b + 3, b + 2))
                    w = k('ds_write_b64 v%d, %s offset:%d' % (AM, vr(b, 2), 512 * (6 - u) + 14336 * (sl - 2)))
            wload(k, 2)
        wload(k, RING)
        k('s_cmp_lg_u32 s3, 0')
        k.wait(w)
        return pl
    pl = prologue(k)
    k('s_barrier')
    stamp(k, 9)

    XB = {0: BIG, 1: BIG + 16, 3: BIG + 32, 5: 208, 7: 224, 9: 240, 11: BIG + 48, 13: BIG + 64}
    XB.update({ks: BIG + 80 + 16 * (j & 1) for j, ks in enumerate((2, 4, 6, 8, 10, 12))})

    def xn(a, ks, lay):
        if not NR[lay] and ks in (2, 4, 6, 8):
            return slot(48 + 2 * (ks - 2) + a)
        return vr(XB[ks] + 4 * a, 4)
    NR = (OPT['nr'], OPT['nr2'])
    A2, HV, O0, X1, D0, E0, MU, RW = BIG + 48, 88, 94, 48, 244, 252, 254, 44
    NM = 392 + 224
    CG = OPT['cg']
    P2 = OPT['nf'] < NPZ
    assert NA == NPZ

    def hoff(x):
        st = x // 4
        return (st & 1) * 64 * 28672 + (st >> 1) * 4096

    def hchk(regs, lay):
        out, r, tmp = [], [], [CK, FV, PD]
        regs = sorted(regs, key=lambda x: x[0])
        for x in regs:
            n = int(re.match(r'.\[(\d+):', x).group(1))
            if x[0] == 'a':
                if not tmp:
                    out.append('v_bitop3_b32 v%d, v%d, v%d, v%d bitop3:0x%x' % (CK, r[0], r[1], r[2], 0x80 if lay else 0xfe))
                    r, tmp = [CK], [FV, PD]
                t = tmp.pop(0)
                out.append('v_accvgpr_read_b32 v%d, a%d' % (t, n))
                n = t
            r.append(n)
        while len(r) > 2:
            out.append('v_bitop3_b32 v%d, v%d, v%d, v%d bitop3:0x%x' % (CK, r[0], r[1], r[2], 0x80 if lay else 0xfe))
            r = [CK] + r[3:]
        out.append('v_bitop3_b32 v%d, v%d, v%d, 1 bitop3:0x%x' % (CK, r[0], r[-1], 0x80 if lay else 0xa8))
        return '\n'.join(out + ['v_cmp_ne_u32 vcc, %d, v%d' % (lay, CK)])

    def build(est, lay):
        O = lambda x: OPT.get(x + '2', OPT[x]) if lay else OPT[x]
        use = {n: (4 * n, 4 * n + 3) for n in range(98)}
        order2, horder = [], []
        LT = OPT['lt']
        horder = [4 * st + a for st in range(14 - LT) for a in range(4)] + [4 * st + a for a in (1, 2, 3, 0) for st in range(14 - LT, 14)]
        for x in horder:
            st, a = x // 4, x % 4
            for t in range(4):
                g = 392 + len(order2)
                for key in (98 + 4 * st + t, ('h', x)):
                    use[key] = (use.get(key, (g, g))[0], g)
                order2.append((st, a, t))
        groups = [horder[j:j + CG] for j in range(0, 56, CG)]
        need = {}
        for gr in groups:
            for x in gr:
                need[x] = use[('h', gr[0])][0] - OPT['ck']
        P0 = PF if lay else RP + min(8, RWN)
        lds = list(range(SA0, SA0 + 9)) + (list(range(154 - NB, 154)) if lay else [])
        wq = [n for n in range(P0, 154) if not (lay and n in lds)]
        chk = [O('ca'), O('cb'), O('cc'), O('cs')]
        plan, pace, todo = [], 1.0, list(horder)
        while wq or todo:
            hok = todo and pace >= chk[min(3, todo[0] // 16)]
            if hok and (not wq or need[todo[0]] <= use[wq[0]][0] + OPT['hb']):
                plan.append(('h', todo.pop(0), pace))
            elif wq:
                n = wq.pop(0)
                plan.append(('d' if n in lds else 'w', n, pace))
            else:
                pace = chk[min(3, todo[0] // 16)]
                continue
            pace += (O('p1') if pace < chk[0] else O('pA') if pace < chk[1] else O('pB') if pace < chk[2] else O('pc')) / 10
        if not lay:
            pace = max(pace, OPT['t0'])
            for n in range(RP, RP + NT):
                plan.append(('p', n, pace))
                pace += OPT['tp'] / 10
        for n in lds:
            plan.append(('r', n, use[n][0] - OPT['xl']))
        plan.sort(key=lambda z: z[2])
        pool = [(use[x][1] if x < P0 else -1 if x < 48 or NR[lay] else 336 + 4 * SORD.index(2 + 2 * ((x - 48) // 4)) + x % 4, slot(x)) for x in range(RING)]
        keep = {slot(x) for x in range(RP, RP + NT)} if not lay else set()
        hpool = [(336 + x, vr(BIG + 4 * x, 4)) for x in range(12)] + [(356 + x, vr(208 + 4 * x, 4)) for x in range(9)]
        hpool += [(est.get(('st', 2, 1), 999) + 1, vr(ACC + 4 * x, 4)) for x in range(3)]
        hpool += [(est.get('bar', 999) + 1, vr(ACC + 40 + 4 * x, 4)) for x in range(2)]
        hpool += [(est.get(('st', 3, 0), 999) + 1, vr(b, 4)) for b in (ACC + 32, ACC + 36, ACC + 48, ACC + 52)]
        reg = {x: slot(x) for x in range(P0)}
        dead = []
        qx, ql, qe, qs, qa, qc, qr = Q(), Q(), Q(), Q(), Q(), Q(), Q()
        wl = WL()
        hld, dm = {}, {}
        last = 0
        for kind, x, e in plan:
            s = S()
            if kind == 'd':
                dm[x] = wl.dma(s, x)
                dead.append((dm[x], use[SA0][0] - OPT['xl'] - 30))
                ql.add(s, e)
                continue
            if kind == 'p':
                fr = [z[0] for z in pool if z[1] == slot(x)][0]
                wl(s, x)
                ql.add(s, max(e, fr))
                continue
            key = ('h', x) if kind == 'h' else x
            pool.sort(key=lambda z: z[0])
            hpool.sort(key=lambda z: z[0])
            cand = [z for z in pool if z[1] not in keep or use[key][1] < OPT['t0']]
            if kind != 'r':
                e = max(e, last)
            if kind == 'h' and hpool[0][0] <= max(e, cand[0][0]):
                pl_, z = hpool, hpool[0]
            else:
                pl_, z = pool, cand[0]
            pl_.remove(z)
            fr, r = z
            reg[key] = r
            pl_.append((use[key][1], r))
            e = max(e, fr)
            if kind == 'r':
                if x == SA0 and dm:
                    s.wait(dm[SA0 + 8])
                j = staged(x)
                ld = s('ds_read_b128 %s, v%d offset:%d' % (r, PZ if j >= 14 else PA, 4096 * (j - 14 if j >= 14 else j)))
                dead.append((ld, use[x][0] - 5))
                qr.add(s, e)
                continue
            last = e
            if kind == 'w':
                ld = wl(s, x, r)
                dead.append((ld, use[key][0] - 8))
            else:
                if e <= est.get('hv', 0):
                    s('s_add_u32 s35, s%d, %d' % (16 + x % 4, hoff(x)))
                    ld = s('buffer_load_dwordx4 %s, v%d, %s, s35 offen %s' % (r, L16, WS, MOD[OPT['mh']]))
                else:
                    w_ = wl.window(s, 43, hoff(x))
                    ld = s('buffer_load_dwordx4 %s, v%d, %s, s%d offen %s' % (r, HV + x % 4, WS, w_, MOD[OPT['mh']]))
                hld[x] = ld
                dead.append((ld, need[x] - 8))
            if len(s) > 1:
                ql.add(S([s.pop(0)]), e - 1)
            ql.add(s, e)
        brs = []
        for j, gr in enumerate(groups):
            if OPT['nochk']:
                break
            s = S()
            s(hchk([reg[('h', x)] for x in gr], lay))
            brs.append(s('s_cbranch_vccnz k_hs%d_%d' % (lay, j)))
            s('k_hb%d_%d:' % (lay, j))
            qc.add(s, need[gr[0]] - (len(s) - 5) // 2)
            dead.append((brs[-1], use[('h', gr[0])][0] - 1))
        mf = S()
        xuse = []
        for p in range(3):
            for ks in range(14):
                xuse.append((ks, len(mf), 4))
                for mat in range(2):
                    for a in range(4):
                        d = vr(ACC + 32 * (p & 1) + 16 * mat + 4 * a, 4)
                        mf('%s %s, %s, %s, %s' % (MF, d, reg[len(mf) // 4], xn(a, ks, lay), d if ks else '0'))
        for j, ks in enumerate(SORD):
            xuse.append((ks, len(mf), 0))
            for a in range(4):
                d = vr(ACC + 32 + 4 * a, 4)
                mf('%s %s, %s, %s, %s' % (MF, d, reg[len(mf) // 4], xn(a, ks, lay), d if j else '0'))
        for st, a, t in order2:
            d = vr(A2 + 16 * a + 4 * t, 4)
            mf('%s %s, %s, %s, %s' % (MF, d, reg[98 + 4 * st + t], reg[('h', 4 * st + a)], d if st else '0'))
        assert len(mf) == NM
        cur, nrd = {}, 0
        for ks, g, ext in xuse:
            old = cur.get(xn(0, ks, lay))
            cur[xn(0, ks, lay)] = (ks, g + ext)
            if g < 16 or (old and old[0] == ks):
                continue
            for a in range(4):
                s = S()
                r = s(xrd(a, ks, lay))
                qx.add(s, old[1] + 4 + 2 * (a >> 1) if old else nrd // 2 * 3)
                nrd += 1
                dead.append((r, g + a - 6))
        qx.items.sort(key=lambda z: z[0])
        un = [0]

        def unit(s, G, U, R, sel=False):
            t = TMP + 4 * (un[0] & 1)
            un[0] += 1
            if sel:
                for j in range(4):
                    s('v_cndmask_b32 v%d, v%d, v%d, s[52:53]' % (t + j, G + j, U + j))
            for j in range(4):
                s('v_exp_f32 v%d, v%d' % (t + j, t + j if sel else G + j))
            if OPT['pk']:
                for j in (0, 2):
                    s('v_pk_mul_f32 %s, %s, %s' % (vr(G + j, 2), vr(G + j, 2), vr(U + j, 2)))
                for j in (0, 2):
                    s('v_pk_fma_f32 %s, %s, s[54:55], s[54:55] op_sel_hi:[1,0,0]' % (vr(t + j, 2), vr(t + j, 2)))
            else:
                for j in range(4):
                    s('v_mul_f32 v%d, v%d, v%d' % (G + j, G + j, U + j))
                for j in range(4):
                    s('v_fma_f32 v%d, v%d, s54, s54' % (t + j, t + j))
            for j in range(4):
                s('v_rcp_f32 v%d, v%d' % (t + j, t + j))
            if OPT['pk']:
                for j in (0, 2):
                    s('v_pk_mul_f32 %s, %s, %s' % (vr(t + j, 2), vr(t + j, 2), vr(G + j, 2)))
            else:
                for j in range(4):
                    s('v_mul_f32 v%d, v%d, v%d' % (t + j, t + j, G + j))
            for j in range(2):
                s('v_cvt_pk_bf16_f32 v%d, v%d, v%d' % (R + j, t + 2 * j, t + 2 * j + 1))
        mark = {}

        def pair(s, G, ph, P, sel=False):
            for z in range(2):
                unit(s, G + 4 * z, G + 16 + 4 * z, G + 2 * z, sel)
            if 0 < ph < 3 and P == 0:
                s('s_add_u32 s44, s42, %d' % (8192 * ph))
            for j in range(2):
                s('v_permlane32_swap_b32 v%d, v%d' % (G + j, G + 2 + j))
            s('v_or_b32 v%d, 1, v%d' % (G, G) if lay else 'v_and_b32 v%d, -2, v%d' % (G, G))
            mark[('st', ph, P)] = s('buffer_store_dwordx4 %s, v%d, %s, s%d offen %s' % (vr(G, 4), (HO, HT)[P] if ph < 3 else HS, WS, 44 if 0 < ph < 3 else 42, MOD[OPT['ms']]))
        if P2 and not lay:
            s = S()
            s('s_mov_b32 s34, 0x%x' % FLG)
            s('buffer_store_dword v%d, v%d, %s, s34 offen sc1' % (L16, FV, WS))
            qs.add(s, OPT['g2f'])
            s = S()
            p2 = s('buffer_load_dword v%d, v%d, %s, s34 offen sc1' % (PD, PA, WS))
            qs.add(s, OPT['g2p'])
            s = S()
            s.wait(p2)
            s('v_cmp_ne_u32 vcc, 0, v%d\ns_cbranch_vccnz k_p2\nk_p2b:' % PD)
            mark['p2'] = s[-2]
            qs.add(s, OPT['g2c'])
        s = S()
        if lay:
            s('v_add_u32 v%d, s62, v%d' % (PA, L16))
        else:
            s('v_add_u32 v%d, s62, v%d\nv_add_u32 v%d, %d, v%d' % (PZ, L16, PZ, L_H - L_WT, PZ))
        qa.add(s, 90)
        s = S()
        sw = [s('ds_write_b128 v%d, %s offset:%d' % (SXW, vr(ACC + 32 + 8 + 4 * z, 4), 1024 * z)) for z in range(2)]
        qs.add(s, 394)
        mark['sw'] = sw[1]
        for p in range(3):
            s = S()
            for P in range(2):
                pair(s, ACC + 32 * (p & 1) + 8 * P, p, P)
            qe.add(s, 112 * (p + 1) + 2)
            if p < 2:
                dead.append((mark[('st', p, 1)], 112 * (p + 2) - 2))
        c1 = S()
        c1('v_lshl_add_u32 v%d, s20, 10, v%d' % (HV, L16))
        for a in range(1, 4):
            c1('v_xor_b32 v%d, %d, v%d' % (HV + a, 1024 * a, HV))
        mark['hv'] = c1[-1]
        mark['c1'] = c1[0]
        qa.add(c1, est.get(('st', 1, 1), 0) + 1)
        c2 = S()
        c2("""v_add_u32 v{d}, s56, v{L16}
        v_min_u32 v{e}, 1, v3
        v_add_u32 v{e1}, s58, v{d}
        v_mad_i32_i24 v{e}, v{e}, s69, v{e1}
        v_add_u32 v{e1}, s57, v{d}
        v_lshl_add_u32 v{mu}, s20, 4, v2
        v_lshlrev_b32 v{mu}, 3, v{mu}
        v_add_u32 v{mu}, {fin}, v{mu}
        ds_read_u16 v{e}, v{e}
        ds_read_u16 v{e1}, v{e1}
        ds_read_b64 v[{mu}:{sg}], v{mu}
        ds_read_b128 v[{d4}:{d7}], v{d} offset:1024
        ds_read_b128 v[{d}:{d3}], v{d}""".format(d=D0, d3=D0 + 3, d4=D0 + 4, d7=D0 + 7, e=E0, e1=E0 + 1, mu=MU, sg=MU + 1, fin=L_FIN, L16=L16))
        mark['gath'] = c2[-1]
        qa.add(c2, max(370, est.get(('st', 2, 1), 0) + 1))
        s = S()
        s.wait(*(sw + [c2[-1]]))
        mark['bar'] = s('s_barrier')
        for z in range(2):
            s('ds_read_b128 %s, v%d offset:%d' % (vr(ACC + 48 + 4 * z, 4), SXP, 1024 * z))
        qs.add(s, OPT['sb'])
        s = S()
        pair(s, ACC + 32, 3, 0, True)
        qe.add(s, est.get('bar', 0) + 4)
        s = S()
        for P in range(2):
            for j in range(8):
                x, d = X1 + 8 * P + j, D0 + 4 * P + j // 2
                if j == 0:
                    s('v_lshlrev_b32 v%d, 16, v%d' % (x, E0 + P))
                else:
                    s('v_perm_b32 v%d, v%d, v%d, s%d' % (x, d, d - 1, 59 + (1 - j % 2)))
        for j in range(16):
            s('v_fma_f32 v%d, v%d, v%d, v%d' % (X1 + j, X1 + j, MU + 1, MU))
        s("""v_mul_u32_u24 v{o}, s61, v2
        v_mad_u32_u24 v{o}, v3, s63, v{o}
        v_add_u32 v{o}, s55, v{o}
        v_add_u32 v{o1}, 1, v3
        v_lshrrev_b32 v{o1}, 2, v{o1}
        v_lshl_add_u32 v{o1}, v{o1}, 31, v{o}
        v_lshl_add_u32 v{o1}, s63, 2, v{o1}
        v_add_u32 v{r3}, s39, v{L16}""".format(o=O0, o1=O0 + 1, r3=RW + 3, L16=L16))
        for a in range(1, 4):
            s('s_xor_b32 s34, s20, %d\ns_mul_i32 s34, s34, 14336\nv_add_u32 v%d, s34, v%d' % (a, RW + a - 1, L16))
        qe.add(s, 0)
        rw = []
        for a in range(1, 4):
            s = S()
            for t in range(4):
                rw.append(s('ds_write_b128 v%d, %s offset:%d' % (RW + a - 1, vr(A2 + 16 * a + 4 * t, 4), 1024 * (4 * (a - 1) + t))))
            qs.add(s, NM - 16 * LT + 4 * LT * a - 1, 1 if LT == 1 or a == 3 else 2)
        if OPT['eb']:
            s = S()
            s.wait(*rw)
            s('s_barrier')
            for P in range(2):
                for a in range(3):
                    for t in range(2 * P, 2 * P + 2):
                        s('ds_read_b128 %s, v%d offset:%d' % (vr(A2 + 16 + 16 * a + 4 * t, 4), RW + 3, 1024 * (4 * a + t)))
            qs.add(s, 0)
        log = {}
        c1_ = est.get(('st', 3, 0), 999) + 1 if OPT['c1'] == 0 else OPT['c1']
        o, left = sched(mf, [qx, qc, qs, qr, ql, qa, qe] if LT > 1 else [qx, qs, qc, qr, ql, qa, qe], log, lambda g: O('cap') if O('c0') <= g < c1_ else 2)
        got = {key: log.get(id(v), 9999) for key, v in mark.items()}
        return o, left, got, dead, log, rw, groups, brs, hld, reg

    def xrd(a, ks, lay):
        return 'ds_read_b128 %s, v%d offset:%d' % (xn(a, ks, lay), VO if a < 2 else VT, 14336 * (a & 1) + 1024 * ks)

    def gemm(k, lay):
        est = {}
        for it in range(14):
            o, left, got, dead, log, rw, groups, brs, hld, reg = build(est, lay)
            if all(got[x] <= est.get(x, -1) for x in got):
                break
            est = {x: got[x] if it < 4 else max(got[x], est[x]) for x in got}
        else:
            assert 0
        if OPT['rep']:
            print(sorted(got.items(), key=lambda z: z[1]), 'left', [getattr(x, 'mn', 'w') for x in left])
            hid = {id(x) for x in hld.values()}
            print('at/lead', ' '.join(('h' + i.ops[0][0] if id(i) in hid else 'd' if i.cls == 'dma' else '') + '%d/%d' % (log.get(id(i), 9999), d + 8 - log.get(id(i), 9999)) for i, d in dead if i.cls in ('vld', 'dma')))
        for ins, d in dead:
            assert log.get(id(ins), 9999) <= d, (ins.text, log.get(id(ins)), d)
        assert got['sw'] < got['bar'] - 1 and got['gath'] < got['bar'] - 1 and got['hv'] < 345 and got[('st', 1, 1)] < got['c1']
        pos = {id(x): j for j, x in enumerate(o)}
        if 'p2' in got:
            assert got['p2'] < min(log[id(x)] for x in hld.values()) and OPT['g2f'] < 80
        for j, br in enumerate(brs):
            ld, w_ = [], None
            for gr in groups[j:]:
                for x in gr:
                    if pos[id(hld[x])] < pos[id(br)] and (x // 4 % 2, x // 16) in {(y // 4 % 2, y // 16) for y in groups[j]}:
                        if hoff(x) != w_:
                            w_ = hoff(x)
                            ld.append('s_add_u32 s35, s43, %d' % w_)
                        ld.append('buffer_load_dwordx4 %s, v%d, %s, s35 offen sc1' % (reg[('h', x)], HV + x % 4, WS))
            slow('k_hs%d_%d:' % (lay, j))
            if OPT['stamps']:
                slow('s_add_u32 s45, s45, %d' % (1 << (8 * min(3, groups[j][0] // 16))))
            spin(slow, 'k_hp%d_%d' % (lay, j), '\n'.join(ld), hchk([reg[('h', x)] for x in groups[j]], lay))
            slow('s_branch k_hb%d_%d' % (lay, j))
        if OPT['stamps'] in (1, 2):
            for g_, n_ in ((520, 12), (392, 10)) if OPT['stamps'] == 1 else list(zip(SG, (1, 2, 3, 4, 5, 6, 8, 10, 12)))[::-1]:
                i = [j for j, x in enumerate(o) if x.cls == 'mfma'][g_]
                s = S()
                stamp(s, n_, True)
                o[i + 1:i + 1] = s
        if OPT['nost']:
            o = [x for x in o if x.cls != 'vst']
        for n in range(8):
            k(xrd(n % 4, n // 4, lay))
        k.extend(o)
        k.extend(left)
        stamp(k, 11)
        for j in range(8):
            k('v_pk_add_f32 %s, %s, %s' % (vr(A2 + 2 * j, 2), vr(A2 + 2 * j, 2), vr(X1 + 2 * j, 2)))
        if not OPT['eb']:
            k.wait(*rw)
            k('s_barrier')
            for P in range(2):
                for a in range(3):
                    for t in range(2 * P, 2 * P + 2):
                        k('ds_read_b128 %s, v%d offset:%d' % (vr(A2 + 16 + 16 * a + 4 * t, 4), RW + 3, 1024 * (4 * a + t)))
        for P in range(2):
            for a in range(3):
                for j in range(4 * P, 4 * P + 4):
                    k('v_pk_add_f32 %s, %s, %s' % (vr(A2 + 2 * j, 2), vr(A2 + 2 * j, 2), vr(A2 + 16 + 16 * a + 2 * j, 2)))
            b = A2 + 8 * P
            for j in range(4):
                k('v_cvt_pk_bf16_f32 v%d, v%d, v%d' % (b + j, b + 2 * j, b + 2 * j + 1))
            k('buffer_store_dwordx4 %s, v%d, %s, 0 offen%s' % (vr(b, 4), O0 + P, SO if lay else WS, ' ' + MOD[OPT['mo']] if lay else ' sc1'))
        stamp(k, 13)
    k('s_cbranch_scc1 k_g2')
    gemm(k, 0)
    if P2:
        slow('k_p2:')
        spin(slow, 'k_p2s', 'buffer_load_dword v%d, v%d, %s, s34 offen sc1' % (PD, PA, WS), 'v_cmp_ne_u32 vcc, 0, v%d' % PD)
        slow('s_branch k_p2b')
    wl = WL()
    for n in range(RP + NT, RP + NT + R1):
        wl(k, n)
    stamp(k, 14)
    stamp_save(k, 0)
    b_trig(k)
    k("""s_mov_b32 s3, 1
    s_mov_b32 s100, 2048
    s_mov_b32 s101, 0x4000
    s_mov_b32 s4, s8
    s_mov_b32 s5, s9
    s_mov_b32 s6, s10
    s_add_u32 s36, s36, 0x%x
    s_add_u32 s37, s37, 0x%x
    s_lshl_b32 s55, s24, 10
    s_add_u32 s55, s55, s27
    s_mul_i32 s55, s55, 896
    s_mul_i32 s35, s22, 112
    s_add_u32 s55, s55, s35
    s_mov_b32 s61, 57344
    s_mov_b32 s63, 16""" % (Z2 - Z1, Z2 - Z1))
    k.extend(kl2)
    k('k_g2:')
    k.reset()
    k.append(Seed(pl))
    gemm(k, 1)
    if OPT['stamps']:
        k('s_waitcnt vmcnt(0)')
        stamp(k, 14)
        stamp_save(k, 1)
        k("""s_lshl_b32 s35, s2, 2
        s_add_u32 s35, s35, s20
        s_lshl_b32 s35, s35, 8
        s_add_u32 s35, s35, 0x%x
        v_lshlrev_b32 v28, 2, v1
        buffer_store_dword v%d, v28, %s, s35 offen""" % (STP, STV, WS))
    k('k_end:\ns_endpgm')
    k.extend(slow)
    k.reset()
    k("""k_xre:
    s_cmp_eq_u32 s101, 0
    s_cbranch_scc1 k_xok
    s_sub_u32 s101, s101, 1
    s_waitcnt vmcnt(0) lgkmcnt(0)
    s_nop 7
    s_nop 7
    s_branch k_l2""")
    k("""k_rre:
    s_cmp_eq_u32 s101, 0
    s_cbranch_scc1 k_join
    s_sub_u32 s101, s101, 1
    s_mov_b32 s1, s29
    k_res:""")
    for n in range(14):
        k('s_add_u32 m0, s39, %d' % (1024 * n))
        if n and n & 1 == 0:
            k('s_add_u32 s1, s1, s100')
        k('buffer_load_dwordx4 v%d, %s, s1 offen sc1 lds' % (60 + (n & 1), SX_))
    k('s_waitcnt vmcnt(0)\ns_branch k_a2t')
    k.extend(kidle)
    k('k_last:')
    k('s_endpgm')
    return k


HDR = open('cdna_kernels/%s.s.ref' % NAME).read().split('; Override launch geometry')[0]


def main():
    out = [HDR.rstrip()]
    if OPT['stamps'] == 2:
        out.append('; SG ' + ' '.join(map(str, SG)))
    if OPT['stamps'] == 3:
        out.append('; S3')
    out.append('; @launch grid=(256,1,1) block=(256,1,1) lds=%d' % LDS)
    out.append('.amdgcn_target "amdgcn-amd-amdhsa--gfx950"\n.text')
    out += finalize(gen())
    out.append('''.section .rodata,"a"
.p2align 6
.amdhsa_kernel %s_kernel
  .amdhsa_next_free_vgpr 512
  .amdhsa_next_free_sgpr 102
  .amdhsa_accum_offset 256
  .amdhsa_group_segment_fixed_size 0
  .amdhsa_kernarg_size 96
  .amdhsa_user_sgpr_count 2
  .amdhsa_user_sgpr_kernarg_segment_ptr 1
  .amdhsa_system_sgpr_workgroup_id_x 1
.end_amdhsa_kernel
''' % NAME)
    open(sys.argv[1], 'w').write('\n'.join(out) + '\n')


main()
```
